```python
import torch

def _softmax(x, axis=-1):
    return torch.softmax(x, dim=axis)

def _gelu(x):
    return torch.nn.functional.gelu(x, approximate='tanh')

def _silu(x):
    return torch.nn.functional.silu(x)

def _sigmoid(x):
    return torch.sigmoid(x)

def _layernorm(x, axis=-1, eps=1e-05):
    m = x.mean(dim=axis, keepdim=True)
    v = x.var(dim=axis, keepdim=True, unbiased=False)
    return (x - m) / torch.sqrt(v + eps)

def _scatter_add(tgt, idx, src, axis=0):
    return tgt.clone().index_add_(axis, idx, src)

def _segment_sum(src, seg, n):
    out = torch.zeros((n,) + src.shape[1:], dtype=src.dtype)
    return out.index_add_(0, seg, src)

def _pad(x, pw):
    flat = tuple((v for pair in reversed(pw) for v in pair))
    return torch.nn.functional.pad(x, flat)
kernel_name = 'adaLN_cond__ssm_conv_h3__glu_gated_geglu__prompt'

def setup_inputs():

    _w = lambda a: (lambda t: t.to(torch.bfloat16) if t.is_floating_point() else t)(torch.as_tensor(a))

    def _A_setup():
        B, S, D = (1, 2048, 1024)
        ks = 4
        return {'q': _w((lambda *s: torch.randn(*s, dtype=torch.bfloat16) * 0.05)(B, S, D)), 'k': _w((lambda *s: torch.randn(*s, dtype=torch.bfloat16) * 1.6)(B, S, D)), 'v': _w((lambda *s: torch.randn(*s, dtype=torch.bfloat16) * 1.6)(B, S, D)), 'shift_k': _w((lambda *s: torch.randn(*s, dtype=torch.bfloat16) * 1.6)(D, ks) * 0.5), 'ssm_k': _w((lambda *s: torch.randn(*s, dtype=torch.bfloat16) * 1.6)(D, S) * (1.0 / S ** 0.5)), 'ssm_D': _w((lambda *s: torch.randn(*s, dtype=torch.bfloat16) * 1.6)(D))}
    _A_in = _A_setup()

    def _B_setup():
        B, S, Dm, Df = (1, 2048, 1024, 3584)
        return {'x': _w((lambda *s: torch.randn(*s, dtype=torch.bfloat16) * 0.05)(B, S, Dm)), 'w_gate': _w((lambda *s: torch.randn(*s, dtype=torch.bfloat16) * 3.2)(Dm, Df) * Dm ** (-0.5)), 'w_up': _w((lambda *s: torch.randn(*s, dtype=torch.bfloat16) * 3.2)(Dm, Df) * Dm ** (-0.5)), 'w_down': _w((lambda *s: torch.randn(*s, dtype=torch.bfloat16) * 3.2)(Df, Dm) * Df ** (-0.5))}
    _B_in = _B_setup()
    return {'A_q': _A_in['q'], 'A_k': _A_in['k'], 'A_v': _A_in['v'], 'A_shift_k': _A_in['shift_k'], 'A_ssm_k': _A_in['ssm_k'], 'A_ssm_D': _A_in['ssm_D'], 'B_x': _B_in['x'], 'B_w_gate': _B_in['w_gate'], 'B_w_up': _B_in['w_up'], 'B_w_down': _B_in['w_down'], 'c': _w((lambda *s: torch.randn(*s, dtype=torch.bfloat16) * 0.1)(1, 1024) * 8.0), 'w_mod': _w((lambda *s: torch.randn(*s, dtype=torch.bfloat16) * 0.1)(1024, 6 * 1024) * 1024 ** (-0.5) * 8.0)}

def reference(A_q, A_k, A_v, A_shift_k, A_ssm_k, A_ssm_D, B_x, B_w_gate, B_w_up, B_w_down, c, w_mod):

    def _A_ref(q, k, v, shift_k, ssm_k, ssm_D):
        B, S, D = q.shape
        ks = shift_k.shape[-1]
        k_pad = _pad(k, ((0, 0), (ks - 1, 0), (0, 0)))
        k_shift = torch.zeros_like(k)
        for t in range(ks):
            k_shift = k_shift + k_pad[:, t:t + S, :] * shift_k[:, ks - 1 - t][None, None, :]
        kv = k_shift * v
        L = 2 * S
        kv_pad = _pad(kv, ((0, 0), (0, S), (0, 0)))
        kf_pad = _pad(ssm_k, ((0, 0), (0, S)))
        kv_f = (lambda x, axes=(-2, -1): torch.fft.rfft2(x.float(), dim=axes))(kv_pad[:, None, :, :], axes=(1, 2))
        kf_f = (lambda x, axes=(-2, -1): torch.fft.rfft2(x.float(), dim=axes))(kf_pad[:, None, :], axes=(1, 2))
        kf_f = (lambda x, *d: x.permute(*d))(kf_f, 1, 2, 0)
        y_f = kv_f * kf_f[None, :, :, :]
        y = (lambda x, s, axes=(-2, -1): torch.fft.irfft2(x, s=s, dim=axes).to(torch.bfloat16))(y_f, (1, L), axes=(1, 2))[:, 0, :S, :]
        y = y + kv * ssm_D[None, None, :]
        return q * y

    def _B_ref(x, w_gate, w_up, w_down):
        g = torch.einsum('bsd,df->bsf', x, w_gate)
        u = torch.einsum('bsd,df->bsf', x, w_up)
        h = _gelu(g) * u
        return torch.einsum('bsf,fd->bsd', h, w_down)
    x = A_q
    mod = (_silu(c) @ w_mod).reshape(c.shape[0], 6, 1, -1)
    sa, ca, ga, sb, cb, gb = (mod[:, 0].clone(), mod[:, 1].clone(), mod[:, 2].clone(), mod[:, 3].clone(), mod[:, 4].clone(), mod[:, 5].clone())
    h = _layernorm(x, axis=-1) * (1 + ca) + sa
    x = x + ga * _A_ref(h, A_k, A_v, A_shift_k, A_ssm_k, A_ssm_D)
    h = _layernorm(x, axis=-1) * (1 + cb) + sb
    x = x + gb * _B_ref(h, B_w_gate, B_w_up, B_w_down)
    return x
```

```python
import re

TRANS = ('v_exp_f32','v_log_f32','v_rcp_f32','v_rsq_f32','v_sqrt_f32','v_sin_f32','v_cos_f32','v_rcp_iflag_f32')

def regs_of(tok):
    tok = tok.strip()
    tok = re.sub(r'^(neg|abs)\((.*)\)$', r'\2', tok)
    tok = tok.lstrip('-').strip('|')
    m = re.match(r'^([vsa])(\d+)$', tok)
    if m: return {(m.group(1), int(m.group(2)))}
    m = re.match(r'^([vsa])\[(\d+):(\d+)\]$', tok)
    if m: return {(m.group(1), i) for i in range(int(m.group(2)), int(m.group(3))+1)}
    if tok == 'vcc': return {('s',106),('s',107)}
    if tok == 'vcc_lo': return {('s',106)}
    if tok == 'vcc_hi': return {('s',107)}
    if tok == 'exec': return {('s',126),('s',127)}
    if tok == 'm0': return {('s',124)}
    return set()

class Ins:
    def __init__(self, text):
        self.text = text
        t = text.split(';')[0].strip()
        self.label = t.endswith(':')
        self.op = ''
        self.dst = set(); self.src = set()
        self.kind = 'other'
        self.states = 1
        if not t or self.label or t.startswith('.'):
            self.kind = 'none'; self.states = 0; return
        parts = t.split(None, 1)
        op = parts[0]; self.op = op
        rest = parts[1] if len(parts) > 1 else ''
        ops = []; depth = 0; cur = ''
        for ch in rest:
            if ch == '[': depth += 1
            if ch == ']': depth -= 1
            if ch == ',' and depth == 0: ops.append(cur.strip()); cur = ''
            else: cur += ch
        if cur.strip(): ops.append(cur.strip())
        mods = ''
        if ops:
            l = ops[-1].split(None, 1)
            ops[-1] = l[0]
            mods = l[1] if len(l) > 1 else ''
        self.ops = ops; self.mods = mods
        R = [regs_of(o) for o in ops]
        base = re.sub(r'_(e32|e64|dpp|sdwa)$', '', op)
        self.base = base
        self.dpp = ('_dpp' in op) or ('row_' in mods) or ('quad_perm' in mods) or ('wave_sh' in mods)
        if op == 's_nop':
            self.kind = 'nop'; self.states = int(ops[0], 0) + 1
        elif op.startswith('v_mfma'):
            self.kind = 'mfma'; self.dst = R[0]; self.A = R[1]; self.B = R[2]; self.C = R[3]
            self.src = R[1] | R[2] | R[3]
            self.passes = 8 if '32x32' in op else 4
        elif op.startswith('v_'):
            self.kind = 'valu'
            if base.startswith('v_cmp'):
                self.dst = R[0]; self.src = set().union(*R[1:])
            elif base in ('v_readlane_b32', 'v_readfirstlane_b32'):
                self.dst = R[0]; self.src = set().union(*R[1:])
            elif base in ('v_add_co_u32','v_sub_co_u32','v_addc_co_u32','v_subb_co_u32'):
                self.dst = R[0] | R[1]; self.src = set().union(*R[2:])
            elif base in ('v_permlane16_swap_b32','v_permlane32_swap_b32'):
                self.dst = R[0] | R[1]; self.src = R[0] | R[1]
            elif base in ('v_fmac_f32','v_dot2c_f32_bf16','v_pk_fmac_f16'):
                self.dst = R[0]; self.src = set().union(*R)
            elif base == 'v_nop':
                pass
            else:
                self.dst = R[0]; self.src = set().union(*R[1:]) if len(R) > 1 else set()
                if self.dpp or '_sdwa' in op: self.src |= R[0]
                if base == 'v_cndmask_b32' and len(ops) == 3: self.src |= regs_of('vcc')
            if base == 'v_cndmask_b32' and len(ops)==4: pass
        elif op.startswith('ds_'):
            self.kind = 'ds'
            if op.startswith('ds_read') or op.startswith('ds_bpermute') or op.startswith('ds_swizzle') or op.startswith('ds_permute'):
                self.dst = R[0]; self.src = set().union(*R[1:])
            else:
                self.src = set().union(*R)
        elif op.startswith('buffer_') or op.startswith('global_'):
            self.kind = 'vmem'
            self.lds = (' lds' in (' ' + mods)) or op.startswith('global_load_lds')
            if 'load' in op and not self.lds:
                self.dst = R[0]; self.src = set().union(*R[1:])
            else:
                self.src = set().union(*R)
            self.wide_store = ('store' in op) and (op.endswith('x3') or op.endswith('x4'))
            if self.wide_store:
                self.sdata = R[0] if op.startswith('buffer_') else R[1]
            if self.lds: self.src |= regs_of('m0')
        elif op.startswith('s_'):
            self.kind = 'salu'
            if op.startswith('s_cmp') or op.startswith('s_cbranch') or op in ('s_branch','s_barrier','s_waitcnt','s_endpgm','s_setprio','s_sleep') or op.startswith('s_set_gpr'):
                self.src = set().union(*R) if R else set()
            else:
                self.dst = R[0] if R else set(); self.src = set().union(*R[1:]) if len(R) > 1 else set()
                if 'saveexec' in op: self.dst |= regs_of('exec')

def V(s): return {r for r in s if r[0] in 'va'}
def S(s): return {r for r in s if r[0] == 's'}

def need(prev, cur):
    n = 0
    if prev.kind == 'valu':
        pv = V(prev.dst); ps = S(prev.dst)
        if pv:
            if cur.kind == 'mfma' and (pv & cur.src): n = max(n, 2)
            if cur.kind == 'valu':
                if cur.dpp and (pv & cur.src): n = max(n, 2)
                if cur.base.startswith('v_permlane') and (pv & cur.src): n = max(n, 2)
                if cur.base in ('v_readlane_b32','v_readfirstlane_b32') and (pv & cur.src): n = max(n, 1)
                if prev.base in TRANS and cur.base not in TRANS and (pv & (cur.src | cur.dst)): n = max(n, 1)
                if prev.base in TRANS and cur.base in TRANS and (pv & cur.src): n = max(n, 1)
                if ('sdwa' in prev.op and 'dst_sel:DWORD' not in prev.mods) and (pv & cur.src): n = max(n, 1)
            if prev.base in TRANS and cur.kind in ('ds','vmem') and (pv & cur.src): n = max(n, 1)
        if ps:
            if cur.kind == 'valu' and (ps & cur.src):
                n = max(n, 4 if cur.base in ('v_readlane_b32','v_writelane_b32') else 2)
            if cur.kind == 'vmem' and (ps & cur.src): n = max(n, 5)
            if cur.kind == 'salu' and (ps & cur.src): n = max(n, 2)
            if cur.kind == 'mfma' and ({('s',126),('s',127)} & ps): n = max(n, 4)
    if prev.kind == 'mfma':
        P = prev.passes
        big = {4: 8, 8: 12}[P]; ovl = {4: 6, 8: 10}[P]; war = {4: 3, 8: 7}[P]
        if cur.kind == 'mfma':
            if prev.dst & (cur.A | cur.B): n = max(n, big)
            if prev.dst & cur.C:
                if prev.dst == cur.C and prev.passes == cur.passes: pass
                else: n = max(n, ovl)
            elif prev.dst & cur.dst: n = max(n, ovl)
        elif cur.kind in ('valu',):
            if prev.dst & (cur.src | cur.dst): n = max(n, big)
            if prev.C & cur.dst: n = max(n, war)
        elif cur.kind in ('ds','vmem'):
            if prev.dst & (cur.src | cur.dst): n = max(n, big)
    if prev.kind == 'salu':
        if ('s',124) in prev.dst and cur.kind == 'vmem' and getattr(cur,'lds',False): n = max(n, 1)
    if prev.kind == 'vmem' and getattr(prev, 'wide_store', False):
        if cur.kind == 'valu' and (prev.sdata & cur.dst): n = max(n, 2)
        elif cur.kind in ('ds','vmem','mfma') and (prev.sdata & cur.dst): n = max(n, 1)
    if prev.kind == 'ds' and prev.op in ('ds_write_b128','ds_write_b96','ds_write2_b64') and cur.kind=='valu':
        pass
    return n

class Asm:
    def __init__(self):
        self.lines = []
        self.uid = 0
    def I(self, text):
        for l in text.split('\n'):
            if l.strip(): self.lines.append(l.strip())
    def __call__(self, text): self.I(text)
    def L(self, name): self.lines.append(name + ':')
    def C(self, text): self.lines.append('; ' + text)
    def label(self, base):
        self.uid += 1; return f'{base}_{self.uid}'
    def finalize(self, window=16):
        out = []; hist = []
        nnop = 0
        for l in self.lines:
            ins = Ins(l)
            if ins.kind == 'none':
                out.append(l);
                continue
            dist = 0; pad = 0
            for p in reversed(hist):
                n = need(p, ins)
                if n > dist: pad = max(pad, n - dist)
                dist += p.states
                if dist >= window: break
            if pad > 0:
                nnop += 1
                while pad > 0:
                    k = min(pad, 16)
                    nop = Ins(f's_nop {k-1}'); out.append(f's_nop {k-1}'); hist.append(nop); pad -= k
            out.append(l); hist.append(ins)
            if len(hist) > 64: hist = hist[-40:]
        txt = ''
        for l in out:
            if l.endswith(':') or l.startswith('.') or l.startswith(';'): txt += l + '\n'
            else: txt += '    ' + l + '\n'
        return txt, nnop

def vr(a, n=1):
    return f'v{a}' if n == 1 else f'v[{a}:{a+n-1}]'
def sr(a, n=1):
    return f's{a}' if n == 1 else f's[{a}:{a+n-1}]'
```

```python
from asmlib import *

NAME = 'adaLN_cond__ssm_conv_h3__glu_gated_geglu__prompt'
A_Q, A_K, A_V, A_SHK, A_SSMK, A_SSMD, B_X, B_WG, B_WU, B_WD, A_C, A_WMOD, A_OUT, A_DBG, A_WS = [8*i for i in range(15)]
S, D, F = 2048, 1024, 3584
WS_MOD = 0
WS_Y2  = 1 << 20
WS_X1  = WS_Y2 + (4 << 20)
WS_H2F = WS_X1 + (4 << 20)
WS_HF  = WS_H2F + (4 << 20)
SRD3 = '0x00020000'

def srd(a, d, base, size, off=0):
    if off:
        a(f's_add_u32 s{d}, s{base}, {off}')
        a(f's_addc_u32 s{d+1}, s{base+1}, 0')
    else:
        a(f's_mov_b32 s{d}, s{base}')
        a(f's_mov_b32 s{d+1}, s{base+1}')
    a(f's_mov_b32 s{d+2}, {size}')
    a(f's_mov_b32 s{d+3}, {SRD3}')

def kernel_begin(a, name):
    a.lines.append(f'.globl {name}')
    a.lines.append('.p2align 8')
    a.lines.append(f'.type {name},@function')
    a.L(name)

def kernel_desc(name, vgpr, sgpr=102):
    acc = (vgpr + 3) // 4 * 4
    return f'''.amdhsa_kernel {name}
  .amdhsa_next_free_vgpr {vgpr}
  .amdhsa_next_free_sgpr {sgpr}
  .amdhsa_accum_offset {acc}
  .amdhsa_group_segment_fixed_size 0
  .amdhsa_kernarg_size 120
  .amdhsa_user_sgpr_count 2
  .amdhsa_user_sgpr_kernarg_segment_ptr 1
  .amdhsa_system_sgpr_workgroup_id_x 1
  .amdhsa_float_denorm_mode_32 3
.end_amdhsa_kernel
'''

class LQ:
    def __init__(self, a):
        self.a = a; self.q = []
    def issue(self, text, tag):
        assert len(self.q) < 15, 'lgkmcnt overflow'
        self.a(text); self.q.append(tag)
    def need(self, *tags):
        idx = -1
        for i, t in enumerate(self.q):
            if t in tags: idx = i
        if idx >= 0:
            n = len(self.q) - 1 - idx
            self.a(f's_waitcnt lgkmcnt({n})')
            self.q = self.q[idx+1:]
    def drain(self):
        if self.q:
            self.a('s_waitcnt lgkmcnt(0)'); self.q = []

def rnd2(a, x, y, t, smask, faithful=True):
    if not faithful: return
    a(f'v_cvt_pk_bf16_f32 v{t}, v{x}, v{y}')
    a(f'v_lshlrev_b32 v{x}, 16, v{t}')
    a(f'v_and_b32 v{y}, s{smask}, v{t}')

def unpack2(a, src, lo, hi, smask):
    a(f'v_lshlrev_b32 v{lo}, 16, v{src}')
    a(f'v_and_b32 v{hi}, s{smask}, v{src}')

import os
STAMP = os.environ.get('STAMP', '0') == '1'
WS_STAMP = 200 << 20
class Stamps:
    def __init__(self, a, kidx, wave_sgpr):
        self.a = a; self.k = kidx; self.n = 0; self.w = wave_sgpr
        if STAMP:
            a('s_memrealtime s[78:79]')
    def __call__(self):
        if not STAMP: return
        self.a(f's_memtime s[{80+2*self.n}:{81+2*self.n}]'); self.n += 1
        assert self.n <= 10
    def flush(self, vtmp=250):
        if not STAMP: return
        a = self.a
        lab = a.label(f'STAMP_SKIP{self.k}')
        a('s_memrealtime s[76:77]')
        a(f's_load_dwordx2 s[72:73], s[0:1], {A_WS}')
        a('s_waitcnt lgkmcnt(0)')
        a(f's_cmp_lg_u32 s{self.w}, 0')
        a(f's_cbranch_scc1 {lab}')
        a(f's_add_u32 s72, s72, {WS_STAMP + self.k*65536}')
        a('s_addc_u32 s73, s73, 0')
        a('s_mov_b32 s74, 65536')
        a('s_mov_b32 s75, 0x00020000')
        a('s_mov_b64 exec, 1')
        a(f'v_mov_b32 v{vtmp+1}, s2')
        a(f'v_lshlrev_b32 v{vtmp+1}, 6, v{vtmp+1}')
        vals = ['s78', 's76'] + [f's{80+2*i}' for i in range(self.n)]
        for i, sv in enumerate(vals):
            a(f'v_mov_b32 v{vtmp}, {sv}')
            a(f'buffer_store_dword v{vtmp}, v{vtmp+1}, s[72:75], 0 offen offset:{4*i}')
            a('s_waitcnt vmcnt(0)')
        a.L(lab)

NT = os.environ.get('NT', 'kvfmxgu')
def nt(c): return ' nt' if c in NT else ''

WT = os.environ.get('WT', ' sc1')
```

```python
from common import *

K1_UR = 0; K1_URCH = 4608
K1_FILT = 18432; K1_FCH = 8320
K1_XCH = K1_FILT
K1_YST = 51712
K1_LDS = 70144
NCONV = 256; NGEMV = 96

def gen_k1(name, faithful=True):
    a = Asm()
    kernel_begin(a, name)
    a(f's_cmp_ge_u32 s2, {NCONV+NGEMV}')
    a('s_cbranch_scc1 K1_END')
    a(f's_cmp_ge_u32 s2, {NCONV}')
    a('s_cbranch_scc1 K1_GEMV')
    st = Stamps(a, 0, 62); st()
    a('s_and_b32 s3, s2, 7')
    a('s_lshl_b32 s3, s3, 5')
    a('s_lshr_b32 s4, s2, 3')
    a('s_add_u32 s3, s3, s4')
    a(f's_load_dwordx4 s[4:7], s[0:1], {A_K}')
    a(f's_load_dwordx4 s[52:55], s[0:1], {A_SHK}')
    a(f's_load_dwordx2 s[56:57], s[0:1], {A_SSMD}')
    a(f's_load_dwordx2 s[58:59], s[0:1], {A_WS}')
    a('v_lshrrev_b32 v1, 6, v0')
    a('s_mov_b32 s63, 0xffff0000')
    a('v_readfirstlane_b32 s62, v1')
    a('s_waitcnt lgkmcnt(0)')
    a('s_lshl_b32 s60, s3, 5')
    a('s_load_dwordx8 s[24:31], s[52:53], s60')
    a('s_lshl_b32 s61, s3, 3')
    a('s_load_dwordx2 s[48:49], s[56:57], s61')
    srd(a, 8, 4, S*D*2)
    srd(a, 12, 6, S*D*2)
    srd(a, 16, 54, D*S*2)
    srd(a, 20, 58, S*D*2, WS_Y2)
    a('v_lshrrev_b32 v2, 8, v0')
    a('v_and_b32 v3, 255, v0')
    a('s_lshl_b32 s64, s3, 14')
    a('v_lshlrev_b32 v4, 12, v2')
    a('v_lshl_add_u32 v4, v3, 4, v4')
    a('v_add_u32 v4, s64, v4')
    a('v_subrev_u32 v5, 4, v4')
    a('s_mov_b32 s65, 8192')
    a('buffer_load_dwordx4 v[8:11], v4, s[16:19], 0 offen' + nt('f'))
    a('buffer_load_dwordx4 v[12:15], v4, s[16:19], s65 offen' + nt('f'))
    a('v_cmp_eq_u32 vcc, 0, v3')
    a('v_cndmask_b32 v5, v5, v4, vcc')
    a('buffer_load_dword v16, v5, s[16:19], 0 offen' + nt('f'))
    a('buffer_load_dword v17, v5, s[16:19], s65 offen' + nt('f'))
    a('v_lshlrev_b32 v6, 13, v0')
    a('v_add_u32 v6, s61, v6')
    a('s_mov_b32 s66, 4096')
    a('v_and_b32 v7, 63, v0')
    a('v_subrev_u32 v18, 6144, v6')
    a('v_mov_b32 v19, 0x80000000')
    a('v_cmp_eq_u32 vcc, 0, v7')
    a('v_cndmask_b32 v18, v19, v18, vcc')
    a('v_cmp_eq_u32 vcc, 0, v0')
    a('v_cndmask_b32 v18, v18, v19, vcc')
    KR = 20
    VR = 34
    def krow(r): return KR + 2*(r+3)
    a(f'buffer_load_dwordx2 v[{krow(-3)}:{krow(-3)+1}], v18, s[8:11], 0 offen' + nt('k'))
    a(f'buffer_load_dwordx2 v[{krow(-2)}:{krow(-2)+1}], v18, s[8:11], 0 offen offset:2048' + nt('k'))
    a(f'buffer_load_dwordx2 v[{krow(-1)}:{krow(-1)+1}], v18, s[8:11], s66 offen' + nt('k'))
    for r in range(4):
        so = 's66' if r >= 2 else '0'
        of = ' offset:2048' if r & 1 else ''
        a(f'buffer_load_dwordx2 v[{krow(r)}:{krow(r)+1}], v6, s[8:11], {so} offen{of}' + nt('k'))
        a(f'buffer_load_dwordx2 v[{VR+2*r}:{VR+2*r+1}], v6, s[12:15], {so} offen{of}' + nt('v'))
    st()
    a('s_cmp_ge_u32 s62, 3')
    a('s_cbranch_scc1 K1_NOPAD')
    a('v_mov_b32 v44, 0'); a('v_mov_b32 v45, 0'); a('v_mov_b32 v46, 0'); a('v_mov_b32 v47, 0')
    a('v_lshrrev_b32 v48, 5, v0')
    a(f'v_mul_u32_u24 v48, {K1_URCH}, v48')
    a('v_and_b32 v49, 31, v0')
    a('v_lshl_add_u32 v48, v49, 4, v48')
    a(f'v_add_u32 v48, {K1_UR+4096}, v48')
    a('v_and_b32 v49, 7, v0')
    a('v_bfe_u32 v50, v0, 3, 2')
    a(f'v_mul_u32_u24 v50, {K1_FCH}, v50')
    a('v_subrev_u32 v51, 2, v49')
    a('v_min_u32 v51, 3, v51')
    a('v_lshlrev_b32 v51, 4, v51')
    a('v_add_u32 v51, 4128, v51')
    a('v_lshlrev_b32 v52, 4, v49')
    a('v_cmp_gt_u32 vcc, 2, v49')
    a('v_cndmask_b32 v51, v51, v52, vcc')
    a('v_add_u32 v50, v50, v51')
    a(f'v_add_u32 v50, {K1_FILT}, v50')
    a('v_cmp_gt_u32 vcc, 128, v0')
    a('v_cndmask_b32 v48, v50, v48, vcc')
    a('ds_write_b128 v48, v[44:47]')
    a.L('K1_NOPAD')
    a('s_waitcnt lgkmcnt(0)')
    for c in range(4):
        for h in range(2):
            a(f's_lshl_b32 s{32+4*c+2*h}, s{24+2*c+h}, 16')
            a(f's_and_b32 s{32+4*c+2*h+1}, s{24+2*c+h}, s63')
    a('s_and_b32 s67, s62, 3')
    a('s_lshr_b32 s68, s62, 2')
    a('s_lshr_b32 s50, s67, 1')
    a('s_cmp_eq_u32 s50, 0')
    a('s_cselect_b32 s50, s48, s49')
    a('s_bitcmp1_b32 s67, 0')
    a('s_cselect_b32 s51, 0, 16')
    a('s_lshl_b32 s50, s50, s51')
    a('s_and_b32 s50, s50, s63')
    a('v_lshrrev_b32 v2, 8, v0')
    a(f'v_mul_u32_u24 v48, {K1_FCH}, v2')
    a('v_lshl_add_u32 v48, v3, 4, v48')
    a(f'v_add_u32 v48, {K1_FILT+32}, v48')
    a('v_cmp_eq_u32 vcc, 0, v3')
    a('s_waitcnt vmcnt(11)')
    a('v_cndmask_b32 v16, v16, 0, vcc')
    a('v_cndmask_b32 v17, v17, 0, vcc')
    for j, (q, p) in enumerate(((8, 16), (12, 17))):
        a(f'ds_write_b128 v48, v[{q}:{q+3}] offset:{j*2*K1_FCH}')
        a(f'v_alignbit_b32 v44, v{q}, v{p}, 16')
        a(f'v_alignbit_b32 v45, v{q+1}, v{q}, 16')
        a(f'v_alignbit_b32 v46, v{q+2}, v{q+1}, 16')
        a(f'v_alignbit_b32 v47, v{q+3}, v{q+2}, 16')
        a(f'ds_write_b128 v48, v[44:47] offset:{j*2*K1_FCH+4160}')
        if j == 0:
            a('s_nop 1')
    a('s_waitcnt vmcnt(0)')
    st()
    for r in (-3, -2, -1):
        for h in range(2):
            a(f'v_mov_b32_dpp v{krow(r)+h}, v{krow(r+4)+h} wave_shr:1 row_mask:0xf bank_mask:0xf')
    KF = 56
    def kf(r, c): return KF + 4*(r+3) + c
    for r in range(-3, 4):
        unpack2(a, krow(r), kf(r,0), kf(r,1), 63)
        unpack2(a, krow(r)+1, kf(r,2), kf(r,3), 63)
    U = 84
    T0, T1, T2, T3, TT = 100, 101, 102, 103, 104
    for r in range(4):
        for cp in range(2):
            c0, c1 = 2*cp, 2*cp+1
            u0, u1 = U+4*r+c0, U+4*r+c1
            if faithful:
                a(f'v_mul_f32 v{u0}, s{32+4*c0+3}, v{kf(r-3,c0)}')
                a(f'v_mul_f32 v{u1}, s{32+4*c1+3}, v{kf(r-3,c1)}')
                rnd2(a, u0, u1, TT, 63)
                for t in (1, 2, 3):
                    a(f'v_mul_f32 v{T0}, s{32+4*c0+3-t}, v{kf(r-3+t,c0)}')
                    a(f'v_mul_f32 v{T1}, s{32+4*c1+3-t}, v{kf(r-3+t,c1)}')
                    rnd2(a, T0, T1, TT, 63)
                    a(f'v_add_f32 v{u0}, v{u0}, v{T0}')
                    a(f'v_add_f32 v{u1}, v{u1}, v{T1}')
                    rnd2(a, u0, u1, TT, 63)
            else:
                a(f'v_mul_f32 v{u0}, s{32+4*c0+3}, v{kf(r-3,c0)}')
                a(f'v_mul_f32 v{u1}, s{32+4*c1+3}, v{kf(r-3,c1)}')
                for t in (1, 2, 3):
                    a(f'v_fma_f32 v{u0}, s{32+4*c0+3-t}, v{kf(r-3+t,c0)}, v{u0}')
                    a(f'v_fma_f32 v{u1}, s{32+4*c1+3-t}, v{kf(r-3+t,c1)}, v{u1}')
            unpack2(a, VR+2*r+cp, T2, T3, 63)
            a(f'v_mul_f32 v{u0}, v{u0}, v{T2}')
            a(f'v_mul_f32 v{u1}, v{u1}, v{T3}')
    a('v_lshlrev_b32 v48, 3, v0')
    a(f'v_sub_u32 v48, {K1_UR+4088}, v48')
    for c in range(4):
        a(f'v_cvt_pk_bf16_f32 v44, v{U+12+c}, v{U+8+c}')
        a(f'v_cvt_pk_bf16_f32 v45, v{U+4+c}, v{U+c}')
        a(f'ds_write_b64 v48, v[44:45] offset:{c*K1_URCH}')
        a('s_nop 0')
    a('s_waitcnt lgkmcnt(0)')
    a('s_barrier')
    st()
    a('v_and_b32 v1, 15, v0')
    a('v_bfe_u32 v2, v0, 4, 2')
    AB, BB, ACC = 8, 40, 72
    VB, VA = 104, 105
    a(f's_mul_i32 s69, s67, {K1_URCH}')
    a('s_lshl_b32 s70, s68, 8')
    a('s_add_u32 s69, s69, s70')
    a(f's_add_u32 s69, s69, {K1_UR+4112-3584}')
    a('v_lshlrev_b32 v3, 5, v1')
    a('v_lshl_add_u32 v3, v2, 4, v3')
    a(f'v_sub_u32 v{VB}, s69, v3')
    a(f's_mul_i32 s69, s67, {K1_FCH}')
    a('s_add_u32 s69, s69, s70')
    a(f's_add_u32 s69, s69, {K1_FILT+32+18}')
    a('v_lshlrev_b32 v3, 1, v1')
    a('v_lshlrev_b32 v4, 4, v2')
    a('v_sub_u32 v3, v3, v4')
    a('v_add_u32 v3, s69, v3')
    a('v_add_u32 v4, 4162, v3')
    a('v_and_b32 v5, 1, v1')
    a('v_cmp_eq_u32 vcc, 1, v5')
    a(f'v_cndmask_b32 v{VA}, v4, v3, vcc')
    for j in range(1, 4):
        a(f'v_add_u32 v{VA+j}, {1024*j}, v{VA}')
    for r in range(32):
        a(f'v_mov_b32 v{ACC+r}, 0')
    a('s_mov_b32 s71, 4')
    a.L('K1_RHO')
    lq = LQ(a)
    def loadA(dp):
        base = VA + (dp >> 1); o = 128*(dp & 1)
        lq.issue(f'ds_read2_b32 v[{AB+4*dp}:{AB+4*dp+1}], v{base} offset0:{o} offset1:{o+1}', f'A{dp}a')
        lq.issue(f'ds_read2_b32 v[{AB+4*dp+2}:{AB+4*dp+3}], v{base} offset0:{o+2} offset1:{o+3}', f'A{dp}b')
    def loadB(e):
        lq.issue(f'ds_read_b128 v[{BB+4*e}:{BB+4*e+3}], v{VB} offset:{512*(7-e)}', f'B{e}')
    loadA(0)
    for e in range(8): loadB(e)
    loadA(1)
    for dp in range(8):
        for e in range(8 - dp):
            t = dp + e
            lq.need(f'A{dp}a', f'A{dp}b', f'B{e}')
            a(f'v_mfma_f32_16x16x32_bf16 v[{ACC+4*t}:{ACC+4*t+3}], v[{AB+4*dp}:{AB+4*dp+3}], v[{BB+4*e}:{BB+4*e+3}], v[{ACC+4*t}:{ACC+4*t+3}]')
            if e == 3 - min(dp, 3) and dp + 2 < 8: loadA(dp + 2)
    lq.drain()
    for j in range(4):
        a(f'v_add_u32 v{VA+j}, 64, v{VA+j}')
    a(f'v_add_u32 v{VB}, 64, v{VB}')
    a('s_sub_u32 s71, s71, 1')
    a('s_cmp_lg_u32 s71, 0')
    a('s_cbranch_scc1 K1_RHO')
    st()
    a('s_barrier')
    a('v_and_b32 v3, 63, v0')
    a('v_lshlrev_b32 v3, 4, v3')
    a('s_lshl_b32 s69, s62, 12')
    a(f's_add_u32 s69, s69, {K1_XCH}')
    a('v_add_u32 v4, s69, v3')
    a('s_xor_b32 s69, s62, 4')
    a('s_lshl_b32 s69, s69, 12')
    a(f's_add_u32 s69, s69, {K1_XCH}')
    a('v_add_u32 v5, s69, v3')
    a('s_nop 4')
    a('s_cmp_eq_u32 s68, 0')
    a('s_cbranch_scc0 K1_X1')
    for j in range(4): a(f'ds_write_b128 v4, v[{ACC+16+4*j}:{ACC+16+4*j+3}] offset:{1024*j}')
    for r in range(16): a(f'v_mov_b32 v{8+r}, v{ACC+r}')
    a('s_branch K1_X2')
    a.L('K1_X1')
    for j in range(4): a(f'ds_write_b128 v4, v[{ACC+4*j}:{ACC+4*j+3}] offset:{1024*j}')
    for r in range(16): a(f'v_mov_b32 v{8+r}, v{ACC+16+r}')
    a.L('K1_X2')
    a('s_waitcnt lgkmcnt(0)')
    a('s_barrier')
    for j in range(4): a(f'ds_read_b128 v[{24+4*j}:{24+4*j+3}], v5 offset:{1024*j}')
    a(f's_mul_i32 s69, s67, {K1_URCH}')
    a('s_lshl_b32 s70, s68, 11')
    a('s_sub_u32 s69, s69, s70')
    a(f's_add_u32 s69, s69, {K1_UR+4088-1536}')
    a('v_lshlrev_b32 v3, 5, v1')
    a('v_lshl_add_u32 v3, v2, 3, v3')
    a('v_sub_u32 v3, s69, v3')
    for j in range(4): a(f'ds_read_b64 v[{40+2*j}:{40+2*j+1}], v3 offset:{512*(3-j)}')
    a('s_mul_i32 s69, s68, 9216')
    a('s_lshl_b32 s70, s67, 4')
    a('s_add_u32 s69, s69, s70')
    a(f's_add_u32 s69, s69, {K1_YST}')
    a('v_mul_u32_u24 v4, 144, v1')
    a('v_lshrrev_b32 v5, 1, v2')
    a('v_lshl_add_u32 v4, v5, 6, v4')
    a('v_and_b32 v5, 1, v2')
    a('v_lshl_add_u32 v4, v5, 3, v4')
    a('v_add_u32 v4, s69, v4')
    a('s_waitcnt lgkmcnt(0)')
    for j in range(4):
        y = [8+4*j+r for r in range(4)]
        for r in range(4): a(f'v_add_f32 v{y[r]}, v{y[r]}, v{24+4*j+r}')
        rnd2(a, y[0], y[1], 48, 63, True)
        rnd2(a, y[2], y[3], 48, 63, True)
        unpack2(a, 40+2*j, 53, 52, 63)
        unpack2(a, 41+2*j, 51, 50, 63)
        for r in range(4): a(f'v_mul_f32 v{50+r}, s50, v{50+r}')
        rnd2(a, 50, 51, 48, 63, faithful)
        rnd2(a, 52, 53, 48, 63, faithful)
        for r in range(4): a(f'v_add_f32 v{y[r]}, v{y[r]}, v{50+r}')
        a(f'v_cvt_pk_bf16_f32 v54, v{y[0]}, v{y[1]}')
        a(f'v_cvt_pk_bf16_f32 v55, v{y[2]}, v{y[3]}')
        a(f'ds_write_b64 v4, v[54:55] offset:{2304*j}')
        a('s_nop 0')
    a('s_waitcnt lgkmcnt(0)')
    a('s_barrier')
    st()
    a('v_lshrrev_b32 v3, 2, v0')
    a('v_and_b32 v4, 3, v0')
    a('v_lshrrev_b32 v5, 1, v3')
    a('v_mul_u32_u24 v5, 144, v5')
    a('v_and_b32 v6, 1, v3')
    a('v_lshl_add_u32 v5, v6, 6, v5')
    a('v_lshl_add_u32 v5, v4, 4, v5')
    a(f'v_add_u32 v5, {K1_YST}, v5')
    a('ds_read_b128 v[8:11], v5')
    a('ds_read_b128 v[12:15], v5 offset:9216')
    a('v_lshlrev_b32 v6, 14, v3')
    a('v_lshl_add_u32 v6, v4, 4, v6')
    a('s_lshl_b32 s69, s3, 6')
    a('v_add_u32 v6, s69, v6')
    a(f's_mov_b32 s70, {128*16384}')
    a('s_waitcnt lgkmcnt(1)')
    a('buffer_store_dwordx4 v[8:11], v6, s[20:23], 0 offen' + WT)
    a('s_waitcnt lgkmcnt(0)')
    a('buffer_store_dwordx4 v[12:15], v6, s[20:23], s70 offen' + WT)
    if STAMP: a('s_waitcnt vmcnt(0)')
    st(); st.flush(100)
    a('s_endpgm')

    a.L('K1_GEMV')
    st = Stamps(a, 0, 71); st()
    a('v_lshrrev_b32 v1, 6, v0')
    a('s_nop 0')
    a('v_readfirstlane_b32 s71, v1')
    a(f's_load_dwordx4 s[4:7], s[0:1], {A_C}')
    a(f's_load_dwordx2 s[58:59], s[0:1], {A_WS}')
    a('s_sub_u32 s60, s2, 256')
    a('s_mov_b32 s63, 0xffff0000')
    a('s_waitcnt lgkmcnt(0)')
    srd(a, 8, 4, 2048)
    srd(a, 12, 6, 1024*6144*2)
    srd(a, 16, 58, 6144*2, WS_MOD)
    a('v_lshlrev_b32 v1, 2, v0')
    a('buffer_load_dword v2, v1, s[8:11], 0 offen')
    a('v_and_b32 v3, 7, v0')
    a('v_lshrrev_b32 v4, 3, v0')
    a(f's_mov_b32 s61, {16*12288}')
    a('v_mul_lo_u32 v5, s61, v4')
    a('v_lshl_add_u32 v5, v3, 4, v5')
    a('s_lshl_b32 s62, s60, 7')
    a('v_add_u32 v5, s62, v5')
    a('s_mov_b32 s64, 0')
    W = 32
    for i in range(16):
        a(f'buffer_load_dwordx4 v[{W+4*i}:{W+4*i+3}], v5, s[12:15], s64 offen' + nt('m'))
        if i < 15: a('s_add_u32 s64, s64, 12288')
    a('s_waitcnt vmcnt(16)')
    unpack2(a, 2, 6, 7, 63)
    for x in (6, 7):
        a(f'v_mul_f32 v8, 0xbfb8aa3b, v{x}')
        a('v_exp_f32 v8, v8')
        a('v_add_f32 v8, 1.0, v8')
        a('v_rcp_f32 v8, v8')
        a(f'v_mul_f32 v{x}, v{x}, v8')
    rnd2(a, 6, 7, 8, 63, True)
    a('v_lshlrev_b32 v9, 3, v0')
    a('ds_write_b64 v9, v[6:7]')
    a('s_waitcnt lgkmcnt(0)')
    a('s_barrier')
    a('v_lshlrev_b32 v9, 6, v4')
    for j in range(4): a(f'ds_read_b128 v[{12+4*j}:{12+4*j+3}], v9 offset:{16*j}')
    ACCG = 96
    for r in range(8): a(f'v_mov_b32 v{ACCG+r}, 0')
    a('s_waitcnt lgkmcnt(0)')
    for i in range(16):
        a(f's_waitcnt vmcnt({15-i})')
        for d in range(4):
            unpack2(a, W+4*i+d, 10, 11, 63)
            a(f'v_fmac_f32 v{ACCG+2*d}, v10, v{12+i}')
            a(f'v_fmac_f32 v{ACCG+2*d+1}, v11, v{12+i}')
    a('v_lshlrev_b32 v9, 8, v4')
    a('v_lshl_add_u32 v9, v3, 5, v9')
    a(f'ds_write_b128 v9, v[{ACCG}:{ACCG+3}] offset:4096')
    a(f'ds_write_b128 v9, v[{ACCG+4}:{ACCG+7}] offset:{4096+16}')
    a('s_waitcnt lgkmcnt(0)')
    a('s_barrier')
    a('v_and_b32 v3, 63, v0')
    a('v_lshrrev_b32 v4, 6, v0')
    a('v_lshlrev_b32 v9, 11, v4')
    a('v_lshl_add_u32 v9, v3, 2, v9')
    for j in range(8): a(f'ds_read_b32 v{12+j}, v9 offset:{4096+256*j}')
    a('s_waitcnt lgkmcnt(0)')
    for j in range(1, 8): a(f'v_add_f32 v12, v12, v{12+j}')
    a('v_lshlrev_b32 v9, 2, v0')
    a('ds_write_b32 v9, v12 offset:24576')
    a('s_waitcnt lgkmcnt(0)')
    a('s_barrier')
    a('v_cmp_gt_u32 vcc, 64, v0')
    a('s_and_saveexec_b64 s[66:67], vcc')
    a('s_cbranch_execz K1_END')
    a('v_lshlrev_b32 v9, 2, v0')
    for j in range(8): a(f'ds_read_b32 v{12+j}, v9 offset:{24576+256*j}')
    a('s_waitcnt lgkmcnt(0)')
    for j in range(1, 8): a(f'v_add_f32 v12, v12, v{12+j}')
    a('v_cvt_pk_bf16_f32 v12, v12, v12')
    a('v_lshlrev_b32 v9, 1, v0')
    a('v_add_u32 v9, s62, v9')
    a('buffer_store_short v12, v9, s[16:19], 0 offen' + WT)
    if STAMP: a('s_waitcnt vmcnt(0)')
    st(); st.flush(100)
    a.L('K1_END')
    a('s_endpgm')
    txt, n = a.finalize()
    return txt, 112
```

```python
from common import *

K2_T = 0; K2_HS = 16384; K2_LDS = 32768

def wave_reduce(a, v, sdst):
    for sh in ('row_shr:1', 'row_shr:2', 'row_shr:4', 'row_shr:8'):
        a(f'v_add_f32_dpp v{v}, v{v}, v{v} {sh} row_mask:0xf bank_mask:0xf')
    a(f'v_add_f32_dpp v{v}, v{v}, v{v} row_bcast:15 row_mask:0xa bank_mask:0xf')
    a(f'v_add_f32_dpp v{v}, v{v}, v{v} row_bcast:31 row_mask:0xc bank_mask:0xf')
    a(f'v_readlane_b32 s{sdst}, v{v}, 63')

def layernorm(a, X, N, faithful, t0, t1, t2, t3, smask):
    a(f'v_add_f32 v{t0}, v{X[0]}, v{X[1]}')
    a(f'v_add_f32 v{t1}, v{X[2]}, v{X[3]}')
    for e in range(4, 16, 2):
        a(f'v_add_f32 v{t0}, v{t0}, v{X[e]}')
        a(f'v_add_f32 v{t1}, v{t1}, v{X[e+1]}')
    a(f'v_add_f32 v{t0}, v{t0}, v{t1}')
    wave_reduce(a, t0, 70)
    a(f'v_mov_b32 v{t2}, s70')
    a(f'v_mul_f32 v{t2}, 0x3a800000, v{t2}')
    for e in range(16): a(f'v_sub_f32 v{N[e]}, v{X[e]}, v{t2}')
    a(f'v_mul_f32 v{t0}, v{N[0]}, v{N[0]}')
    a(f'v_mul_f32 v{t1}, v{N[1]}, v{N[1]}')
    for e in range(2, 16, 2):
        a(f'v_fmac_f32 v{t0}, v{N[e]}, v{N[e]}')
        a(f'v_fmac_f32 v{t1}, v{N[e+1]}, v{N[e+1]}')
    a(f'v_add_f32 v{t0}, v{t0}, v{t1}')
    wave_reduce(a, t0, 71)
    a(f'v_mov_b32 v{t3}, s71')
    a(f'v_mul_f32 v{t3}, 0x3a800000, v{t3}')
    if faithful:
        rnd2(a, t2, t3, t0, smask)
        a(f'v_add_f32 v{t3}, 0x3727c5ac, v{t3}')
        rnd2(a, t3, t3, t0, smask)
        a(f'v_sqrt_f32 v{t3}, v{t3}')
        rnd2(a, t3, t3, t0, smask)
        a(f'v_rcp_f32 v{t3}, v{t3}')
        for e in range(16): a(f'v_sub_f32 v{N[e]}, v{X[e]}, v{t2}')
        for e in range(0, 16, 2): rnd2(a, N[e], N[e+1], t0, smask)
        for e in range(16): a(f'v_mul_f32 v{N[e]}, v{N[e]}, v{t3}')
        for e in range(0, 16, 2): rnd2(a, N[e], N[e+1], t0, smask)
    else:
        a(f'v_add_f32 v{t3}, 0x3727c5ac, v{t3}')
        a(f'v_rsq_f32 v{t3}, v{t3}')
        for e in range(16): a(f'v_mul_f32 v{N[e]}, v{N[e]}, v{t3}')

def gen_k2(name, faithful=True):
    a = Asm()
    kernel_begin(a, name)
    a('s_cmp_ge_u32 s2, 256')
    a('s_cbranch_scc1 K2_END')
    st = Stamps(a, 1, 62); st()
    a(f's_load_dwordx2 s[4:5], s[0:1], {A_Q}')
    a(f's_load_dwordx2 s[6:7], s[0:1], {A_WS}')
    a('v_lshrrev_b32 v1, 6, v0')
    a('s_mov_b32 s63, 0xffff0000')
    a('v_readfirstlane_b32 s62, v1')
    a('v_and_b32 v2, 63, v0')
    a('s_waitcnt lgkmcnt(0)')
    srd(a, 8, 4, S*D*2)
    srd(a, 12, 6, S*D*2, WS_Y2)
    srd(a, 16, 6, 6144*2, WS_MOD)
    srd(a, 20, 6, S*D*2, WS_X1)
    srd(a, 24, 6, S*D*2, WS_H2F)
    a('s_lshl_b32 s60, s2, 14')
    a('v_lshlrev_b32 v3, 5, v0')
    a('buffer_load_dwordx4 v[8:11], v3, s[12:15], s60 offen')
    a('buffer_load_dwordx4 v[12:15], v3, s[12:15], s60 offen offset:16')
    a('s_lshl_b32 s61, s2, 3')
    a('s_add_u32 s61, s61, s62')
    a('s_lshl_b32 s61, s61, 11')
    a('v_lshlrev_b32 v4, 4, v2')
    a('buffer_load_dwordx4 v[16:19], v4, s[8:11], s61 offen' + nt('x'))
    a('buffer_load_dwordx4 v[20:23], v4, s[8:11], s61 offen offset:1024' + nt('x'))
    for k in range(5):
        a(f's_mov_b32 s64, {k*2048}')
        a(f'buffer_load_dwordx4 v[{24+8*k}:{24+8*k+3}], v4, s[16:19], s64 offen')
        a(f'buffer_load_dwordx4 v[{24+8*k+4}:{24+8*k+7}], v4, s[16:19], s64 offen offset:1024')
    a('s_mov_b32 s65, 0x05040100')
    a('s_mov_b32 s66, 0x07060302')
    a('v_lshlrev_b32 v5, 2, v0')
    a('s_waitcnt vmcnt(12)')
    st()
    for r in range(8):
        sel = 's65' if r % 2 == 0 else 's66'
        a(f'v_perm_b32 v{64+r}, v{12+r//2}, v{8+r//2}, {sel}')
        a(f'ds_write_b32 v5, v{64+r} offset:{K2_T+r*2048}')
    a('s_waitcnt lgkmcnt(0)')
    a('s_barrier')
    a('s_lshl_b32 s64, s62, 11')
    a('v_add_u32 v5, s64, v4')
    a(f'ds_read_b128 v[8:11], v5 offset:{K2_T}')
    a(f'ds_read_b128 v[12:15], v5 offset:{K2_T+1024}')
    X = list(range(64, 80)); N = list(range(80, 96)); P = list(range(96, 112))
    T0, T1, T2, T3 = 112, 113, 114, 115
    a('s_waitcnt vmcnt(10)')
    for d in range(8): unpack2(a, 16+d, X[2*d], X[2*d+1], 63)
    layernorm(a, X, N, faithful, T0, T1, T2, T3, 63)
    a('s_waitcnt vmcnt(0) lgkmcnt(0)')
    st()
    def unpack_vec(k, dst):
        for d in range(8): unpack2(a, 24+8*k+d, dst[2*d], dst[2*d+1], 63)
    def rr(L):
        for e in range(0, 16, 2): rnd2(a, L[e], L[e+1], T0, 63, faithful)
    def modulate(kc, ks_):
        unpack_vec(kc, P)
        for e in range(16): a(f'v_add_f32 v{P[e]}, 1.0, v{P[e]}')
        for e in range(0, 16, 2): rnd2(a, P[e], P[e+1], T0, 63, True)
        if faithful:
            for e in range(16): a(f'v_mul_f32 v{N[e]}, v{N[e]}, v{P[e]}')
            rr(N)
            unpack_vec(ks_, P)
            for e in range(16): a(f'v_add_f32 v{N[e]}, v{N[e]}, v{P[e]}')
        else:
            Q = list(range(116, 132))
            unpack_vec(ks_, Q)
            for e in range(16): a(f'v_fma_f32 v{N[e]}, v{N[e]}, v{P[e]}, v{Q[e]}')
    modulate(1, 0)
    rr(N)
    for d in range(8): unpack2(a, 8+d, P[2*d], P[2*d+1], 63)
    for e in range(16): a(f'v_mul_f32 v{N[e]}, v{N[e]}, v{P[e]}')
    rr(N)
    unpack_vec(2, P)
    if faithful:
        for e in range(16): a(f'v_mul_f32 v{N[e]}, v{N[e]}, v{P[e]}')
        rr(N)
        for e in range(16): a(f'v_add_f32 v{X[e]}, v{X[e]}, v{N[e]}')
    else:
        for e in range(16): a(f'v_fma_f32 v{X[e]}, v{N[e]}, v{P[e]}, v{X[e]}')
    for d in range(8):
        a(f'v_cvt_pk_bf16_f32 v{8+d}, v{X[2*d]}, v{X[2*d+1]}')
    for d in range(8): unpack2(a, 8+d, X[2*d], X[2*d+1], 63)
    a('buffer_store_dwordx4 v[8:11], v4, s[20:23], s61 offen' + WT)
    a('buffer_store_dwordx4 v[12:15], v4, s[20:23], s61 offen offset:1024' + WT)
    layernorm(a, X, N, faithful, T0, T1, T2, T3, 63)
    modulate(4, 3)
    for d in range(8):
        a(f'v_cvt_pk_bf16_f32 v{16+d}, v{N[2*d]}, v{N[2*d+1]}')
    st()
    a('v_and_b32 v5, 7, v2')
    a('v_xor_b32 v5, s62, v5')
    a('v_lshlrev_b32 v5, 4, v5')
    a('v_lshl_add_u32 v5, v2, 7, v5')
    a(f'ds_write_b128 v5, v[16:19] offset:{K2_HS}')
    a(f'ds_write_b128 v5, v[20:23] offset:{K2_HS+8192}')
    a('s_waitcnt lgkmcnt(0)')
    a('s_barrier')
    a('v_lshlrev_b32 v5, 4, v0')
    a(f'ds_read_b128 v[16:19], v5 offset:{K2_HS}')
    a(f'ds_read_b128 v[20:23], v5 offset:{K2_HS+8192}')
    a('v_lshrrev_b32 v6, 3, v0')
    a('v_xor_b32 v7, v0, v6')
    a('v_and_b32 v7, 7, v7')
    a('v_lshlrev_b32 v7, 4, v7')
    a('v_and_b32 v3, 3, v6')
    a('v_lshl_add_u32 v7, v3, 8, v7')
    a('v_lshrrev_b32 v3, 2, v6')
    a('v_lshl_add_u32 v7, v3, 11, v7')
    a('s_lshr_b32 s64, s2, 2')
    a('s_lshl_b32 s64, s64, 16')
    a('s_bfe_u32 s65, s2, 0x10001')
    a('s_lshl_b32 s65, s65, 10')
    a('s_add_u32 s64, s64, s65')
    a('s_and_b32 s65, s2, 1')
    a('s_lshl_b32 s65, s65, 7')
    a('s_add_u32 s64, s64, s65')
    a('s_add_u32 s65, s64, 32768')
    a('s_waitcnt lgkmcnt(1)')
    a('buffer_store_dwordx4 v[16:19], v7, s[24:27], s64 offen' + WT)
    a('s_waitcnt lgkmcnt(0)')
    a('buffer_store_dwordx4 v[20:23], v7, s[24:27], s65 offen' + WT)
    if STAMP: a('s_waitcnt vmcnt(0)')
    st(); st.flush(140)
    a.L('K2_END')
    a('s_endpgm')
    txt, n = a.finalize()
    return txt, 144
```

```python
from common import *

K3_STAGE = 30720; K3_KS = 15360; K3_MAT = 7680; K3_WB = 960
K3_LDS = 4*K3_STAGE
PD = 5
PREFETCH_WD = os.environ.get('PFWD', '1') == '1'

def gen_k3(name, faithful=True):
    a = Asm()
    kernel_begin(a, name)
    a('s_cmp_ge_u32 s2, 256')
    a('s_cbranch_scc1 K3_END')
    stp = Stamps(a, 2, 62); stp()
    a(f's_load_dwordx4 s[4:7], s[0:1], {B_WG}')
    a(f's_load_dwordx2 s[28:29], s[0:1], {A_WS}')
    a(f's_load_dwordx2 s[30:31], s[0:1], {B_WD}')
    a('v_lshrrev_b32 v1, 6, v0')
    a('s_mov_b32 s63, 0xffff0000')
    a('v_readfirstlane_b32 s62, v1')
    a('v_and_b32 v2, 63, v0')
    a('s_and_b32 s50, s2, 7')
    a('s_lshr_b32 s51, s2, 3')
    a('s_and_b32 s52, s50, 1')
    a('s_lshl_b32 s52, s52, 2')
    a('s_and_b32 s53, s51, 3')
    a('s_add_u32 s52, s52, s53')
    a('s_lshr_b32 s53, s50, 1')
    a('s_lshl_b32 s53, s53, 3')
    a('s_lshr_b32 s54, s51, 2')
    a('s_add_u32 s53, s53, s54')
    a('s_waitcnt lgkmcnt(0)')
    srd(a, 8, 4, D*F*2)
    srd(a, 12, 6, D*F*2)
    srd(a, 16, 28, S*D*2, WS_H2F)
    srd(a, 20, 28, S*D*2, WS_H2F)
    srd(a, 24, 28, S*F*2, WS_HF)
    srd(a, 32, 30, F*D*2)
    VW, VX, VA0, VA1 = 3, 4, 5, 6
    a('v_mul_u32_u24 v7, 4682, v2')
    a('v_lshrrev_b32 v7, 16, v7')
    a('v_mul_u32_u24 v8, 14, v7')
    a('v_sub_u32 v8, v2, v8')
    a('s_lshl_b32 s55, s62, 2')
    a('v_add_u32 v7, s55, v7')
    a('v_mul_u32_u24 v7, 7168, v7')
    a('v_lshl_add_u32 v7, v8, 4, v7')
    a('s_mul_i32 s55, s53, 224')
    a(f'v_add_u32 v{VW}, s55, v7')
    a('s_lshl_b32 s56, s52, 3')
    a('s_add_u32 s56, s56, s62')
    a('s_lshl_b32 s57, s56, 16')
    a('v_lshlrev_b32 v7, 4, v2')
    a(f'v_add_u32 v{VX}, s57, v7')
    a('v_lshrrev_b32 v7, 4, v2')
    a(f'v_mul_u32_u24 v7, {2*K3_WB}, v7')
    a('v_bfe_u32 v8, v2, 2, 2')
    a('v_mul_u32_u24 v8, 224, v8')
    a('v_add_u32 v7, v7, v8')
    a('v_and_b32 v8, 3, v2')
    a(f'v_lshl_add_u32 v{VA0}, v8, 3, v7')
    a(f'v_add_u32 v{VA1}, {2*K3_STAGE}, v{VA0}')
    a(f's_mul_i32 s58, s62, {K3_WB}')
    a('s_mov_b32 s40, 0xffffffff')
    a('s_mov_b32 s41, 0x00ffffff')
    XR, WR, ACC = 64, 96, 128
    s_xoff, s_woff = 44, 45
    def xload(slot, srd_):
        a(f'buffer_load_dwordx4 v[{XR+8*slot}:{XR+8*slot+3}], v{VX}, s[{srd_}:{srd_+3}], s{s_xoff} offen')
        a(f'buffer_load_dwordx4 v[{XR+8*slot+4}:{XR+8*slot+7}], v{VX}, s[{srd_}:{srd_+3}], s{s_xoff} offen offset:1024')
        a(f's_add_u32 s{s_xoff}, s{s_xoff}, 2048')
    def wdma_g(stage_slot, ks):
        a(f's_add_u32 m0, s58, {stage_slot*K3_STAGE + ks*K3_KS}')
        a('s_mov_b64 exec, s[40:41]')
        a(f'buffer_load_dwordx4 v{VW}, s[8:11], s{s_woff} offen' + nt('g') + ' lds')
        a('s_mov_b64 exec, -1')
    def wdma_u(stage_slot, ks):
        a(f's_add_u32 m0, s58, {stage_slot*K3_STAGE + ks*K3_KS + K3_MAT}')
        a('s_mov_b64 exec, s[40:41]')
        a(f'buffer_load_dwordx4 v{VW}, s[12:15], s{s_woff} offen' + nt('u') + ' lds')
        a('s_mov_b64 exec, -1')
        a(f's_add_u32 s{s_woff}, s{s_woff}, {32*7168}')
    def wdma(stage_slot, ks):
        wdma_g(stage_slot, ks); wdma_u(stage_slot, ks)
    a(f's_mov_b32 s{s_xoff}, 0')
    a(f's_mov_b32 s{s_woff}, 0')
    wdma(0, 0); wdma(0, 1)
    xload(0, 16); wdma(1, 0)
    xload(1, 16); wdma(1, 1)
    xload(2, 16); wdma(2, 0)
    xload(3, 16); wdma(2, 1)
    for r in range(112): a(f'v_mov_b32 v{ACC+r}, 0')
    def frag_addr(kstep_in_body, f, h):
        kb = kstep_in_body % 8
        st, ks = kb >> 1, kb & 1
        jt, m = f >> 1, f & 1
        base = VA0 if st < 2 else VA1
        off = (st & 1)*K3_STAGE + ks*K3_KS + m*K3_MAT + h*K3_WB + 32*jt
        return base, off
    def rd(kb, f, h):
        base, off = frag_addr(kb, f, h)
        sl = f % 7
        a(f'ds_read_b64_tr_b16 v[{WR+4*sl+2*h}:{WR+4*sl+2*h+1}], v{base} offset:{off}')
    stp()
    a('s_waitcnt vmcnt(8)')
    a('s_barrier')
    if STAMP: a('s_waitcnt lgkmcnt(0)')
    stp()
    if STAMP: a('s_waitcnt lgkmcnt(0)')
    for f in range(PD):
        rd(0, f, 0); rd(0, f, 1)
    a('s_mov_b32 s46, 4')
    a('s_branch K3_ENTRY')
    a.L('K3_LOOP')
    for kb in range(8):
        st, ks = kb >> 1, kb & 1
        if ks == 0:
            a('s_waitcnt vmcnt(8)')
            a('s_barrier')
            if kb == 6 and PREFETCH_WD:
                a('s_cmp_lg_u32 s46, 1')
                a('s_cbranch_scc1 K3_NOPF')
                a('v_lshlrev_b32 v10, 4, v2')
                a('s_mul_i32 s36, s2, 28672')
                a('s_mul_i32 s37, s62, 3584')
                a('s_add_u32 s36, s36, s37')
                for i in range(4):
                    a(f'buffer_load_dwordx4 v[{48+4*i}:{51+4*i}], v10, s[32:35], s36 offen offset:{1024*i if i < 4 else 0}')
                a.L('K3_NOPF')
            if kb == 0:
                a.L('K3_ENTRY')
                a('s_cmp_eq_u32 s46, 1')
                a(f's_cselect_b32 s22, 0, {S*D*2}')
        xs = kb % 4
        for f in range(14):
            jt, m = f >> 1, f & 1
            sl = f % 7
            a(f's_waitcnt lgkmcnt({2*(PD-1)})')
            nf = f + PD
            nkb, nf2 = (kb, nf) if nf < 14 else (kb + 1, nf - 14)
            for tt in range(2):
                ac = ACC + ((m*7 + jt)*2 + tt)*4
                a(f'v_mfma_f32_16x16x32_bf16 v[{ac}:{ac+3}], v[{WR+4*sl}:{WR+4*sl+3}], v[{XR+8*xs+4*tt}:{XR+8*xs+4*tt+3}], v[{ac}:{ac+3}]')
                rd(nkb, nf2, tt)
            if f == 13:
                xload(xs, 16 if kb < 4 else 20)
            if f == 2:
                wdma_g((st + 3) % 4, ks)
            if f == 3:
                wdma_u((st + 3) % 4, ks)
    a('s_sub_u32 s46, s46, 1')
    a('s_cmp_lg_u32 s46, 0')
    a('s_cbranch_scc1 K3_LOOP')
    a('s_waitcnt lgkmcnt(0)')
    stp()
    a('v_and_b32 v7, 15, v2')
    a('v_lshlrev_b32 v7, 4, v7')
    a('v_bfe_u32 v8, v2, 4, 1')
    a('v_lshl_add_u32 v7, v8, 10, v7')
    a('v_lshrrev_b32 v8, 5, v2')
    a('v_lshl_add_u32 v7, v8, 8, v7')
    a('s_mul_i32 s57, s56, 229376')
    a('v_add_u32 v7, s57, v7')
    a('s_mul_i32 s59, s53, 7')
    import struct
    c1 = -2*1.4426950408889634*0.7978845608028654
    c2 = c1*0.044715
    f2u = lambda x: struct.unpack('<I', struct.pack('<f', x))[0]
    a(f's_mov_b32 s47, {f2u(c1):#x}')
    a(f's_mov_b32 s48, {f2u(c2):#x}')
    a('v_mov_b32 v9, s47')
    a('s_nop 7')
    T = 16
    for jt in range(7):
        ob = 32 + 4*(jt % 4)
        for tt in range(2):
            G = ACC + ((0*7 + jt)*2 + tt)*4
            U = ACC + ((1*7 + jt)*2 + tt)*4
            for rp in range(2):
                g0, g1, u0, u1 = G+2*rp, G+2*rp+1, U+2*rp, U+2*rp+1
                rnd2(a, g0, g1, T, 63, faithful)
                rnd2(a, u0, u1, T, 63, faithful)
                for g, t in ((g0, T+1), (g1, T+2)):
                    a(f'v_mul_f32 v{t}, v{g}, v{g}')
                    a(f'v_fma_f32 v{t}, v{t}, s48, v9')
                    a(f'v_mul_f32 v{t}, v{t}, v{g}')
                    a(f'v_exp_f32 v{t}, v{t}')
                    a(f'v_add_f32 v{t}, 1.0, v{t}')
                    a(f'v_rcp_f32 v{t}, v{t}')
                    a(f'v_mul_f32 v{g}, v{g}, v{t}')
                rnd2(a, g0, g1, T, 63, faithful)
                a(f'v_mul_f32 v{g0}, v{g0}, v{u0}')
                a(f'v_mul_f32 v{g1}, v{g1}, v{u1}')
                a(f'v_cvt_pk_bf16_f32 v{ob+2*tt+rp}, v{g0}, v{g1}')
        a(f'v_permlane16_swap_b32 v{ob}, v{ob+2}')
        a(f'v_permlane16_swap_b32 v{ob+1}, v{ob+3}')
        a(f's_add_u32 s60, s59, {jt}')
        a('s_lshr_b32 s61, s60, 1')
        a('s_lshl_b32 s61, s61, 11')
        a('s_and_b32 s60, s60, 1')
        a('s_lshl_b32 s60, s60, 9')
        a('s_add_u32 s60, s60, s61')
        a(f'buffer_store_dwordx4 v[{ob}:{ob+3}], v7, s[24:27], s60 offen' + WT)
    stp()
    if STAMP: a('s_waitcnt vmcnt(0)')
    stp(); stp.flush(250)
    a.L('K3_END')
    a('s_endpgm')
    txt, n = a.finalize()
    return txt, 256 if STAMP else 240
```

```python
from common import *

K4_STAGE = 16384
NS4 = 7
K4_LDS = NS4*16384
PD4 = 3

X4 = os.environ.get('X4', '')
def gen_k4(name, faithful=True):
    a = Asm()
    kernel_begin(a, name)
    a('s_cmp_ge_u32 s2, 256')
    a('s_cbranch_scc1 K4_END')
    stp = Stamps(a, 3, 62); stp()
    a(f's_load_dwordx2 s[4:5], s[0:1], {B_WD}')
    a(f's_load_dwordx2 s[6:7], s[0:1], {A_OUT}')
    a(f's_load_dwordx2 s[28:29], s[0:1], {A_WS}')
    a('v_lshrrev_b32 v1, 6, v0')
    a('s_mov_b32 s63, 0xffff0000')
    a('v_readfirstlane_b32 s62, v1')
    a('v_and_b32 v2, 63, v0')
    a('s_and_b32 s50, s2, 7')
    a('s_lshr_b32 s51, s2, 3')
    a('s_and_b32 s52, s50, 3')
    a('s_lshl_b32 s52, s52, 2')
    a('s_and_b32 s53, s51, 3')
    a('s_add_u32 s52, s52, s53')
    a('s_lshr_b32 s53, s50, 2')
    a('s_lshl_b32 s53, s53, 3')
    a('s_lshr_b32 s54, s51, 2')
    a('s_add_u32 s53, s53, s54')
    a('s_waitcnt lgkmcnt(0)')
    srd(a, 8, 4, F*D*2)
    srd(a, 12, 6, S*D*2)
    srd(a, 16, 28, S*F*2, WS_HF)
    srd(a, 20, 28, S*D*2, WS_X1)
    srd(a, 24, 28, 6144*2, WS_MOD)
    a('s_and_b32 s55, s62, 3')
    a('s_lshr_b32 s56, s62, 2')
    VW0, VW1, VH = 3, 4, 5
    VA = 16
    a('v_lshrrev_b32 v10, 3, v2')
    a('s_lshl_b32 s57, s62, 4')
    a('v_add_u32 v10, s57, v10')
    a('v_lshlrev_b32 v10, 11, v10')
    a('v_bfe_u32 v11, v2, 4, 1')
    a('v_lshlrev_b32 v11, 1, v11')
    a('v_and_b32 v12, 7, v2')
    a('v_xor_b32 v11, v11, v12')
    a('v_lshl_add_u32 v10, v11, 4, v10')
    a('s_lshl_b32 s57, s53, 7')
    a(f'v_add_u32 v{VW0}, s57, v10')
    a(f'v_xor_b32 v{VW1}, 64, v{VW0}')
    a(f'v_add_u32 v{VW1}, {8*2048}, v{VW1}')
    a('s_lshl_b32 s57, s52, 2')
    a('s_add_u32 s57, s57, s55')
    a('s_mul_i32 s57, s57, 229376')
    a('s_lshl_b32 s58, s56, 12')
    a('s_add_u32 s57, s57, s58')
    a('v_lshlrev_b32 v10, 4, v2')
    a(f'v_add_u32 v{VH}, s57, v10')
    a('v_lshrrev_b32 v10, 4, v2')
    a('v_bfe_u32 v11, v2, 2, 2')
    a('v_lshl_add_u32 v12, v10, 3, v11')
    a('v_lshlrev_b32 v12, 7, v12')
    a('v_lshrrev_b32 v11, 1, v11')
    a('v_and_b32 v10, 1, v10')
    a('v_lshl_or_b32 v11, v10, 1, v11')
    a('v_lshl_add_u32 v12, v11, 5, v12')
    a('v_and_b32 v11, 3, v2')
    a('v_lshl_add_u32 v12, v11, 3, v12')
    a('s_lshl_b32 s58, s56, 13')
    a('v_add_u32 v12, s58, v12')
    for jt in range(4): a(f'v_xor_b32 v{VA+jt}, {jt<<5}, v12')
    for jt in range(4): a(f'v_add_u32 v{VA+4+jt}, 65536, v{VA+jt}')
    a('s_lshl_b32 s58, s62, 11')
    HR, WR, ACC = 32, 144, 176
    s_hoff, s_woff = 44, 45
    def hload(slot, srd_=16):
        if 'H' in X4: srd_ = 36
        for i in range(4):
            a(f'buffer_load_dwordx4 v[{HR+16*slot+4*i}:{HR+16*slot+4*i+3}], v{VH}, s[{srd_}:{srd_+3}], s{s_hoff} offen offset:{1024*i}')
        a(f's_add_u32 s{s_hoff}, s{s_hoff}, 8192')
    def wdma(slot):
        WS_ = 's[36:39]' if 'W' in X4 else 's[8:11]'
        a(f's_add_u32 m0, s58, {slot*K4_STAGE}')
        a('s_nop 0')
        a(f'buffer_load_dwordx4 v{VW0}, {WS_}, s{s_woff} offen' + nt('d') + ' lds')
        a(f's_add_u32 m0, s58, {slot*K4_STAGE+1024}')
        a('s_nop 0')
        a(f'buffer_load_dwordx4 v{VW1}, {WS_}, s{s_woff} offen' + nt('d') + ' lds')
        a(f's_add_u32 s{s_woff}, s{s_woff}, {128*2048}')
    a(f's_mov_b32 s{s_hoff}, 0')
    a(f's_mov_b32 s{s_woff}, 0')
    srd(a, 32, 28, S*F*2, WS_HF)
    srd(a, 36, 28, 0, WS_HF)
    for i in range(NS4-1):
        hload(i); wdma(i)
    for r in range(32): a(f'v_mov_b32 v{ACC+r}, 0')
    def rd(st, f, h):
        st %= NS4
        ks, jt = f >> 2, f & 3
        off = (st & 3)*K4_STAGE + ks*4096 + h*512
        va = VA + (4 if st >= 4 else 0)
        sl = f % 8
        a(f'ds_read_b64_tr_b16 v[{WR+4*sl+2*h}:{WR+4*sl+2*h+1}], v{va+jt} offset:{off}')
    stp()
    a(f's_waitcnt vmcnt({6*(NS4-3)})')
    a('s_barrier')
    if STAMP: a('s_waitcnt lgkmcnt(0)')
    stp()
    if STAMP: a('s_waitcnt lgkmcnt(0)')
    for f in range(PD4):
        rd(0, f, 0); rd(0, f, 1)
    a(f's_mov_b32 s46, {28//NS4}')
    a('s_branch K4_ENTRY')
    a.L('K4_LOOP')
    for st in range(NS4):
        a(f's_waitcnt vmcnt({6*(NS4-3)})')
        a('s_barrier')
        if st == 0:
            a.L('K4_ENTRY')
            a('s_cmp_eq_u32 s46, 1')
            a(f's_cselect_b32 s34, 0, {S*F*2}')
        hload((st + NS4 - 1) % NS4, 16 if st == 0 else 32)
        for f in range(8):
            ks, jt = f >> 2, f & 3
            sl = f % 8
            a(f's_waitcnt lgkmcnt({2*(PD4-1)})')
            nf = f + PD4
            nst, nf2 = (st, nf) if nf < 8 else (st + 1, nf - 8)
            for tt in range(2):
                ac = ACC + (jt*2 + tt)*4
                hb = HR + 16*st + 8*ks + 4*tt
                if 'M' not in X4: a(f'v_mfma_f32_16x16x32_bf16 v[{ac}:{ac+3}], v[{WR+4*sl}:{WR+4*sl+3}], v[{hb}:{hb+3}], v[{ac}:{ac+3}]')
                if 'R' not in X4: rd(nst, nf2, tt)
            if f == 1: wdma((st + NS4 - 1) % NS4)
    a('s_sub_u32 s46, s46, 1')
    a('s_cmp_lg_u32 s46, 0')
    a('s_cbranch_scc1 K4_LOOP')
    a('s_waitcnt vmcnt(0) lgkmcnt(0)')
    a('s_barrier')
    stp()
    a('v_and_b32 v10, 15, v2')
    a('v_lshrrev_b32 v11, 4, v2')
    a('v_xor_b32 v11, v11, v10')
    a('v_lshlrev_b32 v11, 4, v11')
    a('v_lshl_add_u32 v11, v10, 8, v11')
    a('s_lshl_b32 s57, s56, 15')
    a('s_lshl_b32 s59, s55, 13')
    a('s_add_u32 s57, s57, s59')
    a('v_add_u32 v11, s57, v11')
    for jt in range(4):
        a(f'v_xor_b32 v12, {jt*64}, v11')
        for tt in range(2):
            ac = ACC + (jt*2 + tt)*4
            a(f'ds_write_b128 v12, v[{ac}:{ac+3}] offset:{tt*4096}')
    a('v_lshrrev_b32 v13, 3, v0')
    a('v_and_b32 v14, 7, v0')
    a('s_lshl_b32 s57, s52, 7')
    a('v_add_u32 v15, s57, v13')
    a('v_lshlrev_b32 v15, 11, v15')
    a('v_lshl_add_u32 v15, v14, 4, v15')
    a('s_lshl_b32 s57, s53, 7')
    a('v_add_u32 v15, s57, v15')
    a(f's_mov_b32 s59, {64*2048}')
    a('buffer_load_dwordx4 v[16:19], v15, s[20:23], 0 offen')
    a('buffer_load_dwordx4 v[20:23], v15, s[20:23], s59 offen')
    a('v_lshlrev_b32 v24, 4, v14')
    a(f's_add_u32 s57, s57, {5*2048}')
    a('buffer_load_dwordx4 v[28:31], v24, s[24:27], s57 offen')
    a('s_waitcnt lgkmcnt(0)')
    a('s_barrier')
    a('v_and_b32 v24, 15, v13')
    a('v_lshlrev_b32 v25, 1, v14')
    a('v_xor_b32 v25, v25, v24')
    a('v_lshlrev_b32 v25, 4, v25')
    a('v_lshl_add_u32 v25, v13, 8, v25')
    a('v_xor_b32 v26, 16, v25')
    GB = list(range(32, 40))
    a('s_waitcnt vmcnt(0)')
    for d in range(4): unpack2(a, 28+d, GB[2*d], GB[2*d+1], 63)
    for j in range(2):
        o = j*64*256
        a(f'ds_read_b128 v[40:43], v25 offset:{o}')
        a(f'ds_read_b128 v[44:47], v26 offset:{o}')
        a(f'ds_read_b128 v[48:51], v25 offset:{o+32768}')
        a(f'ds_read_b128 v[52:55], v26 offset:{o+32768}')
        a('s_waitcnt lgkmcnt(0)')
        for e in range(8): a(f'v_add_f32 v{40+e}, v{40+e}, v{48+e}')
        for e in range(0, 8, 2): rnd2(a, 40+e, 41+e, 56, 63, True)
        for e in range(8): a(f'v_mul_f32 v{40+e}, v{40+e}, v{GB[e]}')
        for e in range(0, 8, 2): rnd2(a, 40+e, 41+e, 56, 63, faithful)
        for d in range(4): unpack2(a, 16+4*j+d, 48+2*d, 49+2*d, 63)
        for e in range(8): a(f'v_add_f32 v{40+e}, v{40+e}, v{48+e}')
        for d in range(4): a(f'v_cvt_pk_bf16_f32 v{58+d+4*(j)}, v{40+2*d}, v{41+2*d}')
        so = '0' if j == 0 else 's59'
        a(f'buffer_store_dwordx4 v[{58+4*j}:{61+4*j}], v15, s[12:15], {so} offen')
    stp()
    if STAMP: a('s_waitcnt vmcnt(0)')
    stp(); stp.flush(216)
    a.L('K4_END')
    a('s_endpgm')
    txt, n = a.finalize()
    return txt, 224 if STAMP else 208
```

```python
import sys
sys.path.insert(0, 'gen')
from common import *
from k1 import *
from k2 import *
from k3 import *
from k4 import *

def build(faithful=True, only=None):
    hdr = open('cdna_kernels/' + NAME + '.s.ref').read().split('; Override launch geometry')[0]
    ks = [('conv_kernel', gen_k1, NCONV+NGEMV, 512, K1_LDS),
          ('rows_kernel', gen_k2, 256, 512, K2_LDS),
          ('ffn1_kernel', gen_k3, 256, 512, K3_LDS),
          ('ffn2_kernel', gen_k4, 256, 512, K4_LDS)]
    out = hdr
    for n, g, grid, blk, lds in ks:
        out += f'; @launch kernel={n} grid=({grid},1,1) block=({blk},1,1) lds={lds}\n'
    out += '.amdgcn_target "amdgcn-amd-amdhsa--gfx950"\n.text\n'
    descs = ''
    for n, g, grid, blk, lds in ks:
        t, v = g(n, faithful)
        out += t
        descs += kernel_desc(n, v)
    out += '.section .rodata,"a"\n.p2align 6\n' + descs
    return out

if __name__ == '__main__':
    faithful = '--fast' not in sys.argv
    txt = build(faithful)
    path = 'cdna_kernels/' + NAME + '.s'
    if '-o' in sys.argv: path = sys.argv[sys.argv.index('-o')+1]
    open(path, 'w').write(txt)
    print('wrote', path, len(txt))
```

```python
from asmlib import *

NAME = 'adaLN_cond__ssm_conv_h3__glu_gated_geglu__prompt'
A_Q, A_K, A_V, A_SHK, A_SSMK, A_SSMD, B_X, B_WG, B_WU, B_WD, A_C, A_WMOD, A_OUT, A_DBG, A_WS = [8*i for i in range(15)]
S, D, F = 2048, 1024, 3584
from layout import *
SRD3 = '0x00020000'

def srd(a, d, base, size, off=0):
    if off:
        a(f's_add_u32 s{d}, s{base}, {off}')
        a(f's_addc_u32 s{d+1}, s{base+1}, 0')
    else:
        a(f's_mov_b32 s{d}, s{base}')
        a(f's_mov_b32 s{d+1}, s{base+1}')
    a(f's_mov_b32 s{d+2}, {size}')
    a(f's_mov_b32 s{d+3}, {SRD3}')

def kernel_begin(a, name):
    a.lines.append(f'.globl {name}')
    a.lines.append('.p2align 8')
    a.lines.append(f'.type {name},@function')
    a.L(name)

def kernel_desc(name, vgpr, sgpr=102):
    acc = (vgpr + 3) // 4 * 4
    return f'''.amdhsa_kernel {name}
  .amdhsa_next_free_vgpr {vgpr}
  .amdhsa_next_free_sgpr {sgpr}
  .amdhsa_accum_offset {acc}
  .amdhsa_group_segment_fixed_size 0
  .amdhsa_kernarg_size 120
  .amdhsa_user_sgpr_count 2
  .amdhsa_user_sgpr_kernarg_segment_ptr 1
  .amdhsa_system_sgpr_workgroup_id_x 1
  .amdhsa_float_denorm_mode_32 3
.end_amdhsa_kernel
'''

class LQ:
    def __init__(self, a):
        self.a = a; self.q = []
    def issue(self, text, tag):
        assert len(self.q) < 15, 'lgkmcnt overflow'
        self.a(text); self.q.append(tag)
    def need(self, *tags):
        idx = -1
        for i, t in enumerate(self.q):
            if t in tags: idx = i
        if idx >= 0:
            n = len(self.q) - 1 - idx
            self.a(f's_waitcnt lgkmcnt({n})')
            self.q = self.q[idx+1:]
    def drain(self):
        if self.q:
            self.a('s_waitcnt lgkmcnt(0)'); self.q = []

def rnd2(a, x, y, t, smask, faithful=True):
    if not faithful: return
    a(f'v_cvt_pk_bf16_f32 v{t}, v{x}, v{y}')
    a(f'v_lshlrev_b32 v{x}, 16, v{t}')
    a(f'v_and_b32 v{y}, s{smask}, v{t}')

def unpack2(a, src, lo, hi, smask):
    a(f'v_lshlrev_b32 v{lo}, 16, v{src}')
    a(f'v_and_b32 v{hi}, s{smask}, v{src}')

import os
STAMP = os.environ.get('STAMP', '0') == '1'
WS_STAMP = 200 << 20
class Stamps:
    def __init__(self, a, kidx, wave_sgpr):
        self.a = a; self.k = kidx; self.n = 0; self.w = wave_sgpr
        if STAMP:
            a('s_memrealtime s[78:79]')
    def __call__(self):
        if not STAMP: return
        self.a(f's_memtime s[{80+2*self.n}:{81+2*self.n}]'); self.n += 1
        assert self.n <= 10
    def flush(self, vtmp=250):
        if not STAMP: return
        a = self.a
        lab = a.label(f'STAMP_SKIP{self.k}')
        a('s_memrealtime s[76:77]')
        a(f's_load_dwordx2 s[72:73], s[0:1], {A_WS}')
        a('s_waitcnt lgkmcnt(0)')
        a(f's_cmp_lg_u32 s{self.w}, 0')
        a(f's_cbranch_scc1 {lab}')
        a(f's_add_u32 s72, s72, {WS_STAMP + self.k*65536}')
        a('s_addc_u32 s73, s73, 0')
        a('s_mov_b32 s74, 65536')
        a('s_mov_b32 s75, 0x00020000')
        a('s_mov_b64 exec, 1')
        a(f'v_mov_b32 v{vtmp+1}, s2')
        a(f'v_lshlrev_b32 v{vtmp+1}, 6, v{vtmp+1}')
        vals = ['s78', 's76'] + [f's{80+2*i}' for i in range(self.n)]
        for i, sv in enumerate(vals):
            a(f'v_mov_b32 v{vtmp}, {sv}')
            a(f'buffer_store_dword v{vtmp}, v{vtmp+1}, s[72:75], 0 offen offset:{4*i}')
            a('s_waitcnt vmcnt(0)')
        a.L(lab)

NT = os.environ.get('NT', '')
def nt(c): return ' nt' if c in NT else ''

WT = os.environ.get('WT', ' sc1')
```

```python
from common import *

K4_STAGE = 16384
NS4 = 7
K4_LDS = NS4*16384
PD4 = 3

X4 = os.environ.get('X4', '')
def gen_k4(name, faithful=True):
    a = Asm()
    kernel_begin(a, name)
    a('s_cmp_ge_u32 s2, 256')
    a('s_cbranch_scc1 K4_END')
    stp = Stamps(a, 3, 62); stp()
    a(f's_load_dwordx2 s[4:5], s[0:1], {B_WD}')
    a(f's_load_dwordx2 s[6:7], s[0:1], {A_OUT}')
    a(f's_load_dwordx2 s[28:29], s[0:1], {A_WS}')
    a('v_lshrrev_b32 v1, 6, v0')
    a('s_mov_b32 s63, 0xffff0000')
    a('v_readfirstlane_b32 s62, v1')
    a('v_and_b32 v2, 63, v0')
    a('s_and_b32 s50, s2, 7')
    a('s_lshr_b32 s51, s2, 3')
    a('s_and_b32 s52, s50, 3')
    a('s_lshl_b32 s52, s52, 2')
    a('s_and_b32 s53, s51, 3')
    a('s_add_u32 s52, s52, s53')
    a('s_lshr_b32 s53, s50, 2')
    a('s_lshl_b32 s53, s53, 3')
    a('s_lshr_b32 s54, s51, 2')
    a('s_add_u32 s53, s53, s54')
    a('s_waitcnt lgkmcnt(0)')
    srd(a, 8, 4, F*D*2)
    srd(a, 12, 6, S*D*2)
    srd(a, 16, 28, S*F*2, WS_HF)
    srd(a, 20, 28, S*D*2, WS_X1)
    srd(a, 24, 28, 6144*2, WS_MOD)
    a('s_and_b32 s55, s62, 3')
    a('s_lshr_b32 s56, s62, 2')
    VW0, VW1, VH = 3, 4, 5
    VA = 16
    a('v_lshrrev_b32 v10, 3, v2')
    a('s_lshl_b32 s57, s62, 4')
    a('v_add_u32 v10, s57, v10')
    a('v_lshlrev_b32 v10, 11, v10')
    a('v_bfe_u32 v11, v2, 4, 1')
    a('v_lshlrev_b32 v11, 1, v11')
    a('v_and_b32 v12, 7, v2')
    a('v_xor_b32 v11, v11, v12')
    a('v_lshl_add_u32 v10, v11, 4, v10')
    a('s_lshl_b32 s57, s53, 7')
    a(f'v_add_u32 v{VW0}, s57, v10')
    a(f'v_xor_b32 v{VW1}, 64, v{VW0}')
    a(f'v_add_u32 v{VW1}, {8*2048}, v{VW1}')
    a('s_lshl_b32 s57, s52, 2')
    a('s_add_u32 s57, s57, s55')
    a('s_mul_i32 s57, s57, 229376')
    a('s_lshl_b32 s58, s56, 12')
    a('s_add_u32 s57, s57, s58')
    a('v_lshlrev_b32 v10, 4, v2')
    a(f'v_add_u32 v{VH}, s57, v10')
    a('v_lshrrev_b32 v10, 4, v2')
    a('v_bfe_u32 v11, v2, 2, 2')
    a('v_lshl_add_u32 v12, v10, 3, v11')
    a('v_lshlrev_b32 v12, 7, v12')
    a('v_lshrrev_b32 v11, 1, v11')
    a('v_and_b32 v10, 1, v10')
    a('v_lshl_or_b32 v11, v10, 1, v11')
    a('v_lshl_add_u32 v12, v11, 5, v12')
    a('v_and_b32 v11, 3, v2')
    a('v_lshl_add_u32 v12, v11, 3, v12')
    a('s_lshl_b32 s58, s56, 13')
    a('v_add_u32 v12, s58, v12')
    for jt in range(4): a(f'v_xor_b32 v{VA+jt}, {jt<<5}, v12')
    for jt in range(4): a(f'v_add_u32 v{VA+4+jt}, 65536, v{VA+jt}')
    a('s_lshl_b32 s58, s62, 11')
    HR, WR, ACC = 32, 144, 176
    s_hoff, s_woff = 44, 45
    def hload(slot, srd_=16):
        if 'H' in X4: srd_ = 36
        for i in range(4):
            a(f'buffer_load_dwordx4 v[{HR+16*slot+4*i}:{HR+16*slot+4*i+3}], v{VH}, s[{srd_}:{srd_+3}], s{s_hoff} offen offset:{1024*i}')
        a(f's_add_u32 s{s_hoff}, s{s_hoff}, 8192')
    def wdma(slot):
        WS_ = 's[36:39]' if 'W' in X4 else 's[8:11]'
        a(f's_add_u32 m0, s58, {slot*K4_STAGE}')
        a('s_nop 0')
        a(f'buffer_load_dwordx4 v{VW0}, {WS_}, s{s_woff} offen' + nt('d') + ' lds')
        a(f's_add_u32 m0, s58, {slot*K4_STAGE+1024}')
        a('s_nop 0')
        a(f'buffer_load_dwordx4 v{VW1}, {WS_}, s{s_woff} offen' + nt('d') + ' lds')
        a(f's_add_u32 s{s_woff}, s{s_woff}, {128*2048}')
    a(f's_mov_b32 s{s_hoff}, 0')
    a(f's_mov_b32 s{s_woff}, 0')
    srd(a, 32, 28, S*F*2, WS_HF)
    srd(a, 36, 28, 0, WS_HF)
    for i in range(NS4-1):
        hload(i); wdma(i)
    for r in range(32): a(f'v_mov_b32 v{ACC+r}, 0')
    def rd(st, f, h):
        st %= NS4
        ks, jt = f >> 2, f & 3
        off = (st & 3)*K4_STAGE + ks*4096 + h*512
        va = VA + (4 if st >= 4 else 0)
        sl = f % 8
        a(f'ds_read_b64_tr_b16 v[{WR+4*sl+2*h}:{WR+4*sl+2*h+1}], v{va+jt} offset:{off}')
    stp()
    a(f's_waitcnt vmcnt({6*(NS4-3)})')
    a('s_barrier')
    if STAMP: a('s_waitcnt lgkmcnt(0)')
    stp()
    if STAMP: a('s_waitcnt lgkmcnt(0)')
    for f in range(PD4):
        rd(0, f, 0); rd(0, f, 1)
    a(f's_mov_b32 s46, {28//NS4}')
    a('s_branch K4_ENTRY')
    a.L('K4_LOOP')
    for st in range(NS4):
        a(f's_waitcnt vmcnt({6*(NS4-3)})')
        a('s_barrier')
        if st == 0:
            a.L('K4_ENTRY')
            a('s_cmp_eq_u32 s46, 1')
            a(f's_cselect_b32 s34, 0, {S*F*2}')
        hload((st + NS4 - 1) % NS4, 16 if st == 0 else 32)
        for f in range(8):
            ks, jt = f >> 2, f & 3
            sl = f % 8
            a(f's_waitcnt lgkmcnt({2*(PD4-1)})')
            nf = f + PD4
            nst, nf2 = (st, nf) if nf < 8 else (st + 1, nf - 8)
            for tt in range(2):
                ac = ACC + (jt*2 + tt)*4
                hb = HR + 16*st + 8*ks + 4*tt
                if 'M' not in X4: a(f'v_mfma_f32_16x16x32_bf16 v[{ac}:{ac+3}], v[{WR+4*sl}:{WR+4*sl+3}], v[{hb}:{hb+3}], v[{ac}:{ac+3}]')
                if 'R' not in X4: rd(nst, nf2, tt)
            if f == 1: wdma((st + NS4 - 1) % NS4)
    a('s_sub_u32 s46, s46, 1')
    a('s_cmp_lg_u32 s46, 0')
    a('s_cbranch_scc1 K4_LOOP')
    a('s_waitcnt vmcnt(0) lgkmcnt(0)')
    a('s_barrier')
    stp()
    a('v_and_b32 v10, 15, v2')
    a('v_lshrrev_b32 v11, 4, v2')
    a('v_xor_b32 v11, v11, v10')
    a('v_lshlrev_b32 v11, 4, v11')
    a('v_lshl_add_u32 v11, v10, 8, v11')
    a('s_lshl_b32 s57, s56, 15')
    a('s_lshl_b32 s59, s55, 13')
    a('s_add_u32 s57, s57, s59')
    a('v_add_u32 v11, s57, v11')
    for jt in range(4):
        a(f'v_xor_b32 v12, {jt*64}, v11')
        for tt in range(2):
            ac = ACC + (jt*2 + tt)*4
            a(f'ds_write_b128 v12, v[{ac}:{ac+3}] offset:{tt*4096}')
    a('v_lshrrev_b32 v13, 3, v0')
    a('v_and_b32 v14, 7, v0')
    a('s_lshl_b32 s57, s52, 7')
    a('v_add_u32 v15, s57, v13')
    a('v_lshlrev_b32 v15, 11, v15')
    a('v_lshl_add_u32 v15, v14, 4, v15')
    a('s_lshl_b32 s57, s53, 7')
    a('v_add_u32 v15, s57, v15')
    a(f's_mov_b32 s59, {64*2048}')
    a('buffer_load_dwordx4 v[16:19], v15, s[20:23], 0 offen')
    a('buffer_load_dwordx4 v[20:23], v15, s[20:23], s59 offen')
    a('v_lshlrev_b32 v24, 4, v14')
    a(f's_add_u32 s57, s57, {5*2048}')
    a('buffer_load_dwordx4 v[28:31], v24, s[24:27], s57 offen')
    a('s_waitcnt lgkmcnt(0)')
    a('s_barrier')
    a('v_and_b32 v24, 15, v13')
    a('v_lshlrev_b32 v25, 1, v14')
    a('v_xor_b32 v25, v25, v24')
    a('v_lshlrev_b32 v25, 4, v25')
    a('v_lshl_add_u32 v25, v13, 8, v25')
    a('v_xor_b32 v26, 16, v25')
    GB = list(range(32, 40))
    a('s_waitcnt vmcnt(0)')
    for d in range(4): unpack2(a, 28+d, GB[2*d], GB[2*d+1], 63)
    if os.environ.get('EPS'):
        import struct
        ev = struct.unpack('<I', struct.pack('<f', 1.0+float(os.environ['EPS'])))[0]
        for e in range(8): a(f'v_mul_f32 v{GB[e]}, {ev:#x}, v{GB[e]}')
    for j in range(2):
        o = j*64*256
        a(f'ds_read_b128 v[40:43], v25 offset:{o}')
        a(f'ds_read_b128 v[44:47], v26 offset:{o}')
        a(f'ds_read_b128 v[48:51], v25 offset:{o+32768}')
        a(f'ds_read_b128 v[52:55], v26 offset:{o+32768}')
        a('s_waitcnt lgkmcnt(0)')
        for e in range(8): a(f'v_add_f32 v{40+e}, v{40+e}, v{48+e}')
        for e in range(0, 8, 2): rnd2(a, 40+e, 41+e, 56, 63, True)
        for e in range(8): a(f'v_mul_f32 v{40+e}, v{40+e}, v{GB[e]}')
        for e in range(0, 8, 2): rnd2(a, 40+e, 41+e, 56, 63, faithful)
        for d in range(4): unpack2(a, 16+4*j+d, 48+2*d, 49+2*d, 63)
        for e in range(8): a(f'v_add_f32 v{40+e}, v{40+e}, v{48+e}')
        for d in range(4): a(f'v_cvt_pk_bf16_f32 v{58+d+4*(j)}, v{40+2*d}, v{41+2*d}')
        so = '0' if j == 0 else 's59'
        a(f'buffer_store_dwordx4 v[{58+4*j}:{61+4*j}], v15, s[12:15], {so} offen')
    stp()
    if STAMP: a('s_waitcnt vmcnt(0)')
    stp(); stp.flush(216)
    a.L('K4_END')
    a('s_endpgm')
    txt, n = a.finalize()
    return txt, 224 if STAMP else 208
```

```python
from asmlib import *

NAME = 'adaLN_cond__ssm_conv_h3__glu_gated_geglu__prompt'
A_Q, A_K, A_V, A_SHK, A_SSMK, A_SSMD, B_X, B_WG, B_WU, B_WD, A_C, A_WMOD, A_OUT, A_DBG, A_WS = [8*i for i in range(15)]
S, D, F = 2048, 1024, 3584
from layout import *
SRD3 = '0x00020000'

def srd(a, d, base, size, off=0):
    if off:
        a(f's_add_u32 s{d}, s{base}, {off}')
        a(f's_addc_u32 s{d+1}, s{base+1}, 0')
    else:
        a(f's_mov_b32 s{d}, s{base}')
        a(f's_mov_b32 s{d+1}, s{base+1}')
    a(f's_mov_b32 s{d+2}, {size}')
    a(f's_mov_b32 s{d+3}, {SRD3}')

def kernel_begin(a, name):
    a.lines.append(f'.globl {name}')
    a.lines.append('.p2align 8')
    a.lines.append(f'.type {name},@function')
    a.L(name)

def kernel_desc(name, vgpr, sgpr=102):
    acc = (vgpr + 3) // 4 * 4
    return f'''.amdhsa_kernel {name}
  .amdhsa_next_free_vgpr {vgpr}
  .amdhsa_next_free_sgpr {sgpr}
  .amdhsa_accum_offset {acc}
  .amdhsa_group_segment_fixed_size 0
  .amdhsa_kernarg_size 120
  .amdhsa_user_sgpr_count 2
  .amdhsa_user_sgpr_kernarg_segment_ptr 1
  .amdhsa_system_sgpr_workgroup_id_x 1
  .amdhsa_float_denorm_mode_32 3
.end_amdhsa_kernel
'''

class LQ:
    def __init__(self, a):
        self.a = a; self.q = []
    def issue(self, text, tag):
        assert len(self.q) < 15, 'lgkmcnt overflow'
        self.a(text); self.q.append(tag)
    def need(self, *tags):
        idx = -1
        for i, t in enumerate(self.q):
            if t in tags: idx = i
        if idx >= 0:
            n = len(self.q) - 1 - idx
            self.a(f's_waitcnt lgkmcnt({n})')
            self.q = self.q[idx+1:]
    def drain(self):
        if self.q:
            self.a('s_waitcnt lgkmcnt(0)'); self.q = []

def rnd2(a, x, y, t, smask, faithful=True):
    if not faithful: return
    a(f'v_cvt_pk_bf16_f32 v{t}, v{x}, v{y}')
    a(f'v_lshlrev_b32 v{x}, 16, v{t}')
    a(f'v_and_b32 v{y}, s{smask}, v{t}')

def unpack2(a, src, lo, hi, smask):
    a(f'v_lshlrev_b32 v{lo}, 16, v{src}')
    a(f'v_and_b32 v{hi}, s{smask}, v{src}')

import os
STAMP = os.environ.get('STAMP', '0') == '1'
WS_STAMP = 200 << 20
class Stamps:
    def __init__(self, a, kidx, wave_sgpr, vs=255):
        self.a = a; self.k = kidx; self.n = 2; self.w = wave_sgpr; self.vs = vs
        if STAMP:
            a(f'v_mov_b32 v{vs}, 0x11111111')
            a('s_memrealtime s[94:95]')
            a('s_waitcnt lgkmcnt(0)')
            a(f'v_writelane_b32 v{vs}, s94, 0')
    def __call__(self, idx=None):
        if not STAMP: return
        a = self.a
        if idx is not None:
            a('s_memtime s[94:95]'); a('s_waitcnt lgkmcnt(0)'); a(f'v_writelane_b32 v{self.vs}, s94, {idx}'); return
        a('s_memtime s[94:95]')
        a('s_waitcnt lgkmcnt(0)')
        a(f'v_writelane_b32 v{self.vs}, s94, {self.n}'); self.n += 1
        assert self.n <= 16
    def flush(self, vtmp=None):
        if not STAMP: return
        a = self.a; vs = self.vs
        lab = a.label(f'STAMP_SKIP{self.k}')
        a('s_memrealtime s[94:95]')
        a(f's_load_dwordx2 s[96:97], s[0:1], {A_WS}')
        a('s_waitcnt lgkmcnt(0)')
        a(f'v_writelane_b32 v{vs}, s94, 1')
        a(f's_cmp_lg_u32 s{self.w}, {int(os.environ.get("STAMPW", "0"))}')
        a(f's_cbranch_scc1 {lab}')
        a(f's_add_u32 s96, s96, {WS_STAMP + self.k*65536}')
        a('s_addc_u32 s97, s97, 0')
        a('s_mov_b32 s98, 65536')
        a('s_mov_b32 s99, 0x00020000')
        a('s_mov_b64 exec, 0xffff')
        a(f'v_mbcnt_lo_u32_b32 v{vs-1}, -1, 0')
        a(f'v_lshlrev_b32 v{vs-1}, 2, v{vs-1}')
        a('s_lshl_b32 s94, s2, 6')
        a(f'buffer_store_dword v{vs}, v{vs-1}, s[96:99], s94 offen')
        a('s_waitcnt vmcnt(0)')
        a.L(lab)

NT = os.environ.get('NT', '')
def nt(c): return ' nt' if c in NT else ''

WT = os.environ.get('WT', ' sc1')
```

```python
from common import *
from k2 import wave_reduce, pk, layernorm
PF_GU = os.environ.get('PFGU', '1') == '1'
PFROWS = int(os.environ.get('PFROWS', '384'))

UR = 0; URCH = 4608
FILT = 18432; FCH = 8320
YST = 51712
SCB = 70144; PARTB = 72192; CNT = 80384
FE_LDS = 80512
C_FIN, C_B, C_A1, C_A2, C_F, C_U, C_S, C_G, C_L = [CNT + 4*i for i in range(9)]
P2_T = 0; P2_HS = 18432; P2_M = 36864
SPIN_MAX = 1 << 16

def poll_loop(a, label, load_fn, cmp_fn):
    a(f's_mov_b32 s90, {SPIN_MAX}')
    a.L(label)
    load_fn()
    a('s_waitcnt vmcnt(0)')
    cmp_fn()
    a('s_cmp_eq_u64 vcc, -1')
    a(f's_cbranch_scc1 {label}_OK')
    a('s_sleep 1')
    a('s_sub_u32 s90, s90, 1')
    a('s_cmp_lg_u32 s90, 0')
    a(f's_cbranch_scc1 {label}')
    a.L(f'{label}_OK')

def lds_add(a, cnt, va, vb):
    a('s_waitcnt lgkmcnt(0)')
    a(f'v_mov_b32 v{va}, {cnt}')
    a(f'v_mov_b32 v{vb}, 1')
    a('s_mov_b64 exec, 1')
    a(f'ds_add_u32 v{va}, v{vb}')
    a('s_mov_b64 exec, -1')

def lds_wait(a, cnt, n, va, vb, tag):
    a(f'v_mov_b32 v{va}, {cnt}')
    a(f's_mov_b32 s90, {SPIN_MAX*16}')
    a.L(tag)
    a(f'ds_read_b32 v{vb}, v{va}')
    a('s_waitcnt lgkmcnt(0)')
    a(f'v_cmp_eq_u32 vcc, {n}, v{vb}')
    a('s_cmp_eq_u64 vcc, -1')
    a(f's_cbranch_scc1 {tag}_OK')
    a('s_sub_u32 s90, s90, 1')
    a('s_cmp_lg_u32 s90, 0')
    a(f's_cbranch_scc1 {tag}')
    a.L(f'{tag}_OK')

def wait2(a, nA, nB):
    la = a.label('FE_W'); lb = a.label('FE_W')
    a('s_cmp_ge_u32 s62, 4')
    a(f's_cbranch_scc1 {la}')
    a(f's_waitcnt vmcnt({nA})')
    a(f's_branch {lb}')
    a.L(la)
    a(f's_waitcnt vmcnt({nB})')
    a.L(lb)

def filter_and_pads(a):
    a('v_lshlrev_b32 v48, 4, v61')
    a(f'v_add_u32 v48, {FILT+32}, v48')
    a('v_cmp_eq_u32 vcc, 0, v61')
    for j in range(4): a(f'v_cndmask_b32 v{112+j}, v{112+j}, 0, vcc')
    for j in range(4):
        q, p = 96+4*j, 112+j
        a(f'ds_write_b128 v48, v[{q}:{q+3}] offset:{j*FCH}')
        tb = 44 + 4*(j & 1) if False else (116 + 4*(j & 1))
        a(f'v_alignbit_b32 v{tb}, v{q}, v{p}, 16')
        a(f'v_alignbit_b32 v{tb+1}, v{q+1}, v{q}, 16')
        a(f'v_alignbit_b32 v{tb+2}, v{q+2}, v{q+1}, 16')
        a(f'v_alignbit_b32 v{tb+3}, v{q+3}, v{q+2}, 16')
        a(f'ds_write_b128 v48, v[{tb}:{tb+3}] offset:{j*FCH+4160}')
    a('v_mov_b32 v136, 0'); a('v_mov_b32 v137, 0'); a('v_mov_b32 v138, 0'); a('v_mov_b32 v139, 0')
    a('v_bfe_u32 v140, v0, 5, 2')
    a(f'v_mul_u32_u24 v140, {URCH}, v140')
    a('v_and_b32 v141, 31, v0')
    a('v_lshl_add_u32 v140, v141, 4, v140')
    a(f'v_add_u32 v140, {UR+4096}, v140')
    a('v_and_b32 v141, 7, v0')
    a('v_bfe_u32 v142, v0, 3, 2')
    a(f'v_mul_u32_u24 v142, {FCH}, v142')
    a('v_subrev_u32 v143, 2, v141')
    a('v_min_u32 v143, 3, v143')
    a('v_lshlrev_b32 v143, 4, v143')
    a('v_add_u32 v143, 4128, v143')
    a('v_lshlrev_b32 v144, 4, v141')
    a('v_cmp_gt_u32 vcc, 2, v141')
    a('v_cndmask_b32 v143, v143, v144, vcc')
    a('v_add_u32 v142, v142, v143')
    a(f'v_add_u32 v142, {FILT}, v142')
    a('v_and_b32 v141, 128, v0')
    a('v_cmp_eq_u32 vcc, 0, v141')
    a('v_cndmask_b32 v140, v142, v140, vcc')
    a('ds_write_b128 v140, v[136:139]')

def gen_fe(name, faithful=False):
    a = Asm()
    kernel_begin(a, name)
    a('s_cmp_ge_u32 s2, 256')
    a('s_cbranch_scc1 FE_END')
    st = Stamps(a, 0, 62); st()
    a(f's_load_dwordx4 s[4:7], s[0:1], {A_K}')
    a(f's_load_dwordx4 s[52:55], s[0:1], {A_SHK}')
    a(f's_load_dwordx2 s[56:57], s[0:1], {A_SSMD}')
    a(f's_load_dwordx4 s[44:47], s[0:1], {A_C}')
    a(f's_load_dwordx4 s[48:51], s[0:1], {A_DBG}')
    a(f's_load_dwordx2 s[58:59], s[0:1], {A_Q}')
    a('s_memrealtime s[64:65]')
    a('v_lshrrev_b32 v1, 6, v0')
    a('s_mov_b32 s63, 0xffff0000')
    a('v_readfirstlane_b32 s62, v1')
    a('s_lshr_b32 s40, s2, 4')
    a('s_and_b32 s41, s2, 15')
    a('v_lshrrev_b32 v1, 3, v0')
    a('v_and_b32 v2, 7, v0')
    a('s_lshl_b32 s42, s40, 7')
    a('v_lshl_add_u32 v3, v1, 1, s42')
    a('v_lshlrev_b32 v4, 11, v3')
    a('v_lshl_add_u32 v4, v2, 4, v4')
    a('s_lshl_b32 s43, s41, 7')
    a('v_add_u32 v4, s43, v4')
    a('v_bfrev_b32 v8, 1')
    for j in range(3):
        a(f'v_subrev_u32 v{5+j}, {6144-2048*j}, v4')
        a(f'v_cmp_gt_u32 vcc, {3-j}, v3')
        a(f'v_cndmask_b32 v{5+j}, v{5+j}, v8, vcc')
    a('v_lshlrev_b32 v9, 6, v2')
    a('s_lshl_b32 s60, s41, 9')
    a('s_and_b32 s3, s2, 7')
    a('s_lshl_b32 s3, s3, 5')
    a('s_lshr_b32 s61, s2, 3')
    a('s_add_u32 s3, s3, s61')
    a('v_lshlrev_b32 v92, 2, v0')
    a('v_and_b32 v61, 255, v0')
    a('s_lshl_b32 s66, s3, 14')
    a('v_lshlrev_b32 v62, 4, v61')
    a('v_add_u32 v62, s66, v62')
    a('v_subrev_u32 v63, 4, v62')
    a('v_cmp_eq_u32 vcc, 0, v61')
    a('v_cndmask_b32 v63, v63, v62, vcc')
    a('s_waitcnt lgkmcnt(0)')
    srd(a, 8, 4, S*D*2)
    srd(a, 12, 6, S*D*2)
    srd(a, 20, 52, 8192)
    srd(a, 72, 44, 2048)
    K_, V_, T_ = 16, 36, 44
    a('buffer_load_dword v128, v92, s[72:75], 0 offen')
    for j in range(3):
        a(f'buffer_load_dwordx4 v[{K_+4*j}:{K_+4*j+3}], v{5+j}, s[8:11], 0 offen')
    a(f'buffer_load_dwordx4 v[{K_+12}:{K_+15}], v4, s[8:11], 0 offen')
    a(f'buffer_load_dwordx4 v[{K_+16}:{K_+19}], v4, s[8:11], 0 offen offset:2048')
    a(f'buffer_load_dwordx4 v[{V_}:{V_+3}], v4, s[12:15], 0 offen')
    a(f'buffer_load_dwordx4 v[{V_+4}:{V_+7}], v4, s[12:15], 0 offen offset:2048')
    for j in range(4):
        a(f'buffer_load_dwordx4 v[{T_+4*j}:{T_+4*j+3}], v9, s[20:23], s60 offen offset:{16*j}')
    srd(a, 16, 54, D*S*2)
    a('s_cmp_lt_u32 s62, 4')
    a('s_cbranch_scc1 FE_NOFL')
    a('s_mov_b32 s67, 0')
    for j in range(4):
        a(f'buffer_load_dwordx4 v[{96+4*j}:{99+4*j}], v62, s[16:19], s67 offen')
        a(f'buffer_load_dword v{112+j}, v63, s[16:19], s67 offen')
        if j < 3: a('s_add_u32 s67, s67, 4096')
    a.L('FE_NOFL')
    srd(a, 24, 48, 256)
    srd(a, 28, 50, 1 << 20)
    a('s_or_b32 s64, s64, 1')
    a('s_cmp_lg_u32 s2, 0')
    a('s_cbranch_scc1 FE_NONONCE')
    a('v_mov_b32 v10, s64')
    a('v_mov_b32 v11, s65')
    a('v_mov_b32 v12, 0')
    a('s_cmp_lg_u32 s62, 0')
    a('s_cbranch_scc1 FE_NOTW0')
    a('s_mov_b64 exec, 1')
    a('buffer_store_dwordx2 v[10:11], v12, s[24:27], 0 offen sc1')
    a('s_mov_b64 exec, -1')
    a.L('FE_NOTW0')
    a.L('FE_NONONCE')
    a('s_lshl_b32 s68, s3, 3')
    a('s_load_dwordx2 s[70:71], s[56:57], s68')
    srd(a, 32, 58, S*D*2)
    a('v_and_b32 v90, 63, v0')
    a('v_lshlrev_b32 v91, 4, v90')
    a('v_mov_b32 v146, v91')
    a('s_lshl_b32 s69, s2, 3')
    a('s_add_u32 s69, s69, s62')
    a('s_lshl_b32 s69, s69, 11')
    a('s_mov_b32 s78, 0x05040100')
    a('s_mov_b32 s79, 0x07060302')
    a('v_sub_u32 v10, 63, v1')
    a('v_lshlrev_b32 v11, 3, v2')
    a('v_xor_b32 v10, v10, v11')
    a('v_lshlrev_b32 v10, 2, v10')
    a('v_lshl_add_u32 v10, v2, 11, v10')
    a(f'v_add_u32 v10, {YST}, v10')
    a(f'v_mov_b32 v133, {CNT}')
    for r in range(136, 140): a(f'v_mov_b32 v{r}, 0')
    a('ds_write_b128 v133, v[136:139]')
    a('ds_write_b128 v133, v[136:139] offset:16')
    a('ds_write_b128 v133, v[136:139] offset:32')
    wait2(a, 11, 19)
    unpack2(a, 128, 130, 131, 63)
    for x in (130, 131):
        a(f'v_mul_f32 v132, 0xbfb8aa3b, v{x}')
        a('v_exp_f32 v132, v132')
        a('v_add_f32 v132, 1.0, v132')
        a('v_rcp_f32 v132, v132')
        a(f'v_mul_f32 v{x}, v{x}, v132')
    a('v_cvt_pk_bf16_f32 v130, v130, v131')
    a(f'v_add_u32 v133, {SCB}, v92')
    a('ds_write_b32 v133, v130')
    wait2(a, 0, 8)
    st()
    kr = lambda r, d: K_ + 4*(r+3) + d
    for i in range(8):
        d, hf = i >> 1, i & 1
        sel = 's79' if hf else 's78'
        w01, w23 = T_ + 2*i, T_ + 2*i + 1
        b = 64 + 8*(i & 1)
        a(f'v_perm_b32 v{b}, v{kr(-1,d)}, v{kr(0,d)}, {sel}')
        a(f'v_perm_b32 v{b+1}, v{kr(-3,d)}, v{kr(-2,d)}, {sel}')
        a(f'v_perm_b32 v{b+2}, v{kr(0,d)}, v{kr(1,d)}, {sel}')
        a(f'v_perm_b32 v{b+3}, v{kr(-2,d)}, v{kr(-1,d)}, {sel}')
        a(f'v_dot2_f32_bf16 v{b+4}, v{b}, v{w01}, 0')
        a(f'v_dot2_f32_bf16 v{b+5}, v{b+2}, v{w01}, 0')
        a(f'v_dot2c_f32_bf16 v{b+4}, v{b+1}, v{w23}')
        a(f'v_dot2c_f32_bf16 v{b+5}, v{b+3}, v{w23}')
        if hf:
            a(f'v_and_b32 v{b+6}, s63, v{V_+d}'); a(f'v_and_b32 v{b+7}, s63, v{V_+4+d}')
        else:
            a(f'v_lshlrev_b32 v{b+6}, 16, v{V_+d}'); a(f'v_lshlrev_b32 v{b+7}, 16, v{V_+4+d}')
        a(f'v_mul_f32 v{b+4}, v{b+4}, v{b+6}')
        a(f'v_mul_f32 v{b+5}, v{b+5}, v{b+7}')
        a(f'v_cvt_pk_bf16_f32 v{b}, v{b+5}, v{b+4}')
        a(f'ds_write_b32 v10, v{b} offset:{256*i}')
    a('v_bfe_u32 v1, v0, 4, 4')
    a('v_and_b32 v2, 15, v0')
    a('v_lshlrev_b32 v3, 4, v2')
    a('v_lshrrev_b32 v4, 3, v1')
    a('v_lshlrev_b32 v4, 5, v4')
    a('v_xor_b32 v4, v4, v3')
    a('v_lshl_add_u32 v4, v1, 8, v4')
    a(f'v_mul_u32_u24 v6, {UR_CH}, v1')
    a('v_add_u32 v6, v6, v3')
    a(f's_mul_i32 s80, s41, {64*UR_CH}')
    a('s_lshl_b32 s81, s40, 8')
    a('s_sub_u32 s80, s80, s81')
    a('s_add_u32 s80, s80, 3840')
    srd(a, 8, 50, D*UR_CH, WS_UR)
    srd(a, 12, 50, 256*Y2_BLK, WS_Y2)
    a('s_waitcnt lgkmcnt(0)')
    a('s_barrier')
    a('s_cmp_ge_u32 s62, 4')
    a('s_cbranch_scc1 FE_GB')
    for j in range(4):
        a(f'v_xor_b32 v5, {64*j}, v4')
        a(f'ds_read_b128 v[{16+4*j}:{19+4*j}], v5 offset:{YST+4096*j}')
    for j in range(4):
        a(f's_waitcnt lgkmcnt({3-j})')
        a(f'buffer_store_dwordx4 v[{16+4*j}:{19+4*j}], v6, s[8:11], s80 offen sc1')
        if j < 3: a(f's_add_u32 s80, s80, {16*UR_CH}')
    a('s_cmp_lg_u32 s62, 0')
    a('s_cbranch_scc1 FE_NONP')
    a('v_mov_b32 v12, 0')
    def ld_nonce(): a('buffer_load_dwordx2 v[156:157], v12, s[24:27], 0 offen sc1')
    def cmp_nonce(): a('v_cmp_ne_u32 vcc, 0, v156')
    poll_loop(a, 'FE_PN', ld_nonce, cmp_nonce)
    a.L('FE_NONP')
    a('s_waitcnt vmcnt(0)')
    lds_add(a, C_U, 12, 13)
    a('s_cmp_lg_u32 s62, 0')
    a('s_cbranch_scc1 FE_S0_SKIP')
    lds_wait(a, C_U, 4, 12, 13, 'FE_WU')
    st()
    a('v_mov_b32 v12, 0')
    a('s_lshl_b32 s82, s41, 7')
    a('s_lshl_b32 s83, s40, 3')
    a('s_add_u32 s82, s82, s83')
    a(f's_add_u32 s82, s82, {WS_FLAG}')
    a('s_mov_b64 exec, 1')
    a('buffer_store_dwordx2 v[156:157], v12, s[28:31], s82 offen sc1')
    a('s_mov_b64 exec, -1')
    a('s_lshr_b32 s84, s3, 4')
    a('v_and_b32 v12, 15, v0')
    a('v_lshlrev_b32 v12, 3, v12')
    a('s_lshl_b32 s85, s84, 7')
    a(f's_add_u32 s85, s85, {WS_FLAG}')
    def ld0(): a('buffer_load_dwordx2 v[10:11], v12, s[28:31], s85 offen sc1')
    def cmp0(): a('v_cmp_eq_u64 vcc, v[10:11], v[156:157]')
    poll_loop(a, 'FE_P0', ld0, cmp0)
    lds_add(a, C_S, 12, 13)
    a.L('FE_S0_SKIP')
    lds_wait(a, C_S, 1, 12, 13, 'FE_WS')
    st()
    a('v_lshlrev_b32 v13, 4, v0')
    a(f's_mul_i32 s66, s3, {4*UR_CH}')
    for j in range(4):
        a(f'buffer_load_dwordx4 v[{16+4*j}:{19+4*j}], v13, s[8:11], s66 offen sc1')
        a(f's_add_u32 s66, s66, {UR_CH}')
    lds_add(a, C_L, 12, 14)
    a('v_and_b32 v1, 15, v0')
    a('v_bfe_u32 v2, v0, 4, 2')
    SETS = [(24, 56), (160, 192)]
    ACC = 88
    VB, VA = 120, 121
    a(f's_mul_i32 s88, s62, {URCH}')
    a(f's_add_u32 s88, s88, {UR+4112-3584}')
    a('v_lshlrev_b32 v3, 5, v1')
    a('v_lshl_add_u32 v3, v2, 4, v3')
    a(f'v_sub_u32 v{VB}, s88, v3')
    a(f's_mul_i32 s88, s62, {FCH}')
    a(f's_add_u32 s88, s88, {FILT+32+18}')
    a('v_lshlrev_b32 v3, 1, v1')
    a('v_lshlrev_b32 v4, 4, v2')
    a('v_sub_u32 v3, v3, v4')
    a('v_add_u32 v3, s88, v3')
    a('v_add_u32 v4, 4162, v3')
    a('v_and_b32 v5, 1, v1')
    a('v_cmp_eq_u32 vcc, 1, v5')
    a(f'v_cndmask_b32 v{VA}, v4, v3, vcc')
    for j in range(1, 4): a(f'v_add_u32 v{VA+j}, {1024*j}, v{VA}')
    for r in range(32): a(f'v_mov_b32 v{ACC+r}, 0')
    a('s_lshr_b32 s88, s62, 1')
    a('s_cmp_eq_u32 s88, 0')
    a('s_cselect_b32 s88, s70, s71')
    a('s_bitcmp1_b32 s62, 0')
    a('s_cselect_b32 s89, 0, 16')
    a('s_lshl_b32 s88, s88, s89')
    a('s_and_b32 s91, s88, s63')
    for j in range(4):
        a(f's_waitcnt vmcnt({3-j})')
        a(f'ds_write_b128 v13, v[{16+4*j}:{19+4*j}] offset:{UR+URCH*j}')
    a('buffer_load_dwordx4 v[148:151], v146, s[32:35], s69 offen')
    a('buffer_load_dwordx4 v[152:155], v146, s[32:35], s69 offen offset:1024')
    lds_add(a, C_A1, 12, 14)
    lds_wait(a, C_F, 4, 12, 14, 'FE_WF')
    lds_wait(a, C_A1, 4, 12, 14, 'FE_WA1')
    st()
    class Q:
        def __init__(self): self.q = []
        def issue(self, text, tag):
            a(text); self.q.append(tag)
            if len(self.q) >= 13:
                a('s_waitcnt lgkmcnt(8)'); self.q = self.q[-8:]
        def drain(self):
            if self.q: a('s_waitcnt lgkmcnt(0)'); self.q = []
    lq = Q()
    def loads_for(st_, adv):
        AB, BB = SETS[st_]
        L = []
        def la(dp):
            base = VA + (dp >> 1); o = 128*(dp & 1) + 16*adv
            L.append((f'ds_read2_b32 v[{AB+4*dp}:{AB+4*dp+1}], v{base} offset0:{o} offset1:{o+1}', f'{st_}A{dp}a'))
            L.append((f'ds_read2_b32 v[{AB+4*dp+2}:{AB+4*dp+3}], v{base} offset0:{o+2} offset1:{o+3}', f'{st_}A{dp}b'))
        la(0)
        for e in range(8): L.append((f'ds_read_b128 v[{BB+4*e}:{BB+4*e+3}], v{VB} offset:{512*(7-e)+64*adv}', f'{st_}B{e}'))
        for dp in range(1, 8): la(dp)
        return L
    for t_, g_ in loads_for(0, 0): lq.issue(t_, g_)
    lq.drain()
    a('s_mov_b32 s92, 4')
    a.L('FE_RHO')
    for ph in range(2):
        AB, BB = SETS[ph]
        nxt = loads_for(1 - ph, ph + 1)
        k = 0
        for dp in range(8):
            for e in range(8 - dp):
                t = dp + e
                a(f'v_mfma_f32_16x16x32_bf16 v[{ACC+4*t}:{ACC+4*t+3}], v[{AB+4*dp}:{AB+4*dp+3}], v[{BB+4*e}:{BB+4*e+3}], v[{ACC+4*t}:{ACC+4*t+3}]')
                if k < len(nxt):
                    lq.issue(*nxt[k]); k += 1
        lq.drain()
    for j in range(4): a(f'v_add_u32 v{VA+j}, 128, v{VA+j}')
    a(f'v_add_u32 v{VB}, 128, v{VB}')
    a('s_sub_u32 s92, s92, 1')
    a('s_cmp_lg_u32 s92, 0')
    a('s_cbranch_scc1 FE_RHO')
    st()
    a(f's_mul_i32 s88, s62, {URCH}')
    a(f's_add_u32 s88, s88, {UR+4088-3584}')
    a('v_lshlrev_b32 v3, 5, v1')
    a('v_lshl_add_u32 v3, v2, 3, v3')
    a('v_sub_u32 v3, s88, v3')
    for t in range(8): a(f'ds_read_b64 v[{24+2*t}:{25+2*t}], v3 offset:{512*(7-t)}')
    a('s_lshl_b32 s89, s62, 4')
    a(f's_add_u32 s88, s89, {YST}')
    a('v_mul_u32_u24 v4, 144, v1')
    a('v_lshrrev_b32 v6, 1, v2')
    a('v_lshl_add_u32 v4, v6, 6, v4')
    a('v_and_b32 v6, 1, v2')
    a('v_lshl_add_u32 v4, v6, 3, v4')
    a('v_add_u32 v4, s88, v4')
    a('s_waitcnt lgkmcnt(0)')
    for t in range(8):
        y = [ACC+4*t+r for r in range(4)]
        tb = 48 + 8*(t & 1)
        unpack2(a, 24+2*t, tb+3, tb+2, 63)
        unpack2(a, 25+2*t, tb+1, tb, 63)
        for r in range(4): a(f'v_fma_f32 v{y[r]}, s91, v{tb+r}, v{y[r]}')
        a(f'v_cvt_pk_bf16_f32 v{tb+4}, v{y[0]}, v{y[1]}')
        a(f'v_cvt_pk_bf16_f32 v{tb+5}, v{y[2]}, v{y[3]}')
        a(f'ds_write_b64 v4, v[{tb+4}:{tb+5}] offset:{2304*t}')
    a('v_bfe_u32 v3, v0, 2, 6')
    a('v_and_b32 v4, 3, v0')
    a('v_lshrrev_b32 v5, 1, v3')
    a('v_mul_u32_u24 v5, 144, v5')
    a('v_and_b32 v6, 1, v3')
    a('v_lshl_add_u32 v5, v6, 6, v5')
    a('v_lshl_add_u32 v5, v4, 4, v5')
    a(f'v_add_u32 v5, {YST}, v5')
    a(f'v_mul_u32_u24 v6, {Y2_BLK}, v3')
    a('v_lshl_add_u32 v6, v4, 4, v6')
    a('s_lshl_b32 s88, s3, 6')
    lds_add(a, C_A2, 12, 13)
    lds_wait(a, C_A2, 4, 12, 13, 'FE_WA2')
    for j in range(4): a(f'ds_read_b128 v[{8+4*j}:{11+4*j}], v5 offset:{4608*j}')
    for j in range(4):
        a(f's_waitcnt lgkmcnt({3-j})')
        a(f'buffer_store_dwordx4 v[{8+4*j}:{11+4*j}], v6, s[12:15], s88 offen sc1')
        if j < 3: a(f's_add_u32 s88, s88, {64*Y2_BLK}')
    a('s_waitcnt vmcnt(4)')
    a('s_branch FE_YJ')
    a.L('FE_GB')
    a('s_waitcnt vmcnt(0)')
    filter_and_pads(a)
    lds_add(a, C_F, 133, 134)
    a('s_add_u32 s76, s2, 0')
    a('s_cmp_lg_u32 s2, 0')
    a('s_cbranch_scc1 FE_NOZERO')
    a('s_cmp_lg_u32 s62, 5')
    a('s_cbranch_scc1 FE_NOZERO')
    a('v_mov_b32 v12, 0')
    for r in range(120, 124): a(f'v_mov_b32 v{r}, 0')
    a('v_and_b32 v124, 63, v0')
    a('v_lshlrev_b32 v124, 4, v124')
    a(f's_mov_b32 s68, {WS_ACC}')
    for i in range(24):
        a('buffer_store_dwordx4 v[120:123], v124, s[28:31], s68 offen sc1')
        a('s_add_u32 s68, s68, 1024')
    a('s_waitcnt vmcnt(0)')
    a('v_mov_b32 v10, 1')
    a('s_mov_b64 exec, 1')
    a('buffer_store_dword v10, v12, s[24:27], 0 offen offset:8 sc1')
    a('s_mov_b64 exec, -1')
    a.L('FE_NOZERO')
    srd(a, 36, 46, 1024*6144*2)
    a('s_cmp_lt_u32 s2, 192')
    a(f's_cselect_b32 s38, {1024*6144*2}, 0')
    a('s_mul_i32 s76, s2, 5462')
    a('s_lshr_b32 s76, s76, 16')
    a('s_mul_i32 s77, s76, 12')
    a('s_sub_u32 s42, s2, s77')
    a('s_mov_b32 s43, s76')
    a('s_sub_u32 s65, s62, 4')
    a('s_lshl_b32 s76, s43, 6')
    a('s_lshl_b32 s77, s65, 4')
    a('s_add_u32 s76, s76, s77')
    a('s_lshl_b32 s64, s76, 1')
    a('s_mul_i32 s77, s76, 12288')
    a('s_lshl_b32 s76, s42, 10')
    a('s_add_u32 s77, s77, s76')
    a(f's_add_u32 s64, s64, {SCB}')
    a('v_mov_b32 v133, s64')
    a('ds_read_b128 v[136:139], v133')
    a('ds_read_b128 v[140:143], v133 offset:16')
    for r in range(8): a(f'v_mov_b32 v{160+r}, 0')
    NB = int(os.environ.get('GB', '16'))
    def wl(i):
        a(f'buffer_load_dwordx4 v[{176+4*i}:{179+4*i}], v91, s[36:39], s77 offen')
        a('s_add_u32 s77, s77, 12288')
    def wm(p):
        for d in range(4):
            a(f'v_perm_b32 v134, v{176+4*(2*p+1)+d}, v{176+4*(2*p)+d}, s78')
            a(f'v_perm_b32 v135, v{176+4*(2*p+1)+d}, v{176+4*(2*p)+d}, s79')
            a(f'v_dot2c_f32_bf16 v{160+2*d}, v134, v{136+p}')
            a(f'v_dot2c_f32_bf16 v{160+2*d+1}, v135, v{136+p}')
    a('s_cmp_lg_u32 s62, 7')
    a('s_cbranch_scc1 FE_NON7')
    a('v_mov_b32 v133, 0')
    def ld_nonce7(): a('buffer_load_dword v156, v133, s[24:27], 0 offen offset:8 sc1')
    def cmp_nonce7(): a('v_cmp_ne_u32 vcc, 0, v156')
    poll_loop(a, 'FE_PN7', ld_nonce7, cmp_nonce7)
    lds_add(a, C_G, 133, 134)
    a.L('FE_NON7')
    if os.environ.get('WEARLY', '0') != '1': lds_wait(a, C_L, 4, 133, 134, 'FE_WL')
    for i in range(NB): wl(i)
    a('buffer_load_dwordx4 v[148:151], v91, s[32:35], s69 offen')
    a('buffer_load_dwordx4 v[152:155], v91, s[32:35], s69 offen offset:1024')
    a('s_waitcnt lgkmcnt(0)')
    for bt in range(16 // NB):
        if bt + 1 < 16 // NB:
            a('s_waitcnt vmcnt(0)')
            SL = int(os.environ.get('GSLEEP', '0'))
            if SL: a(f's_sleep {SL}')
            for i in range(NB*(bt+1), NB*(bt+2)): wl(i)
        else:
            a('s_waitcnt vmcnt(0)')
        for p in range(NB*bt//2, NB*(bt+1)//2): wm(p)
    st(7)
    a('v_lshlrev_b32 v133, 1, v91')
    a('s_lshl_b32 s64, s65, 11')
    a(f's_add_u32 s64, s64, {PARTB}')
    a('v_add_u32 v133, s64, v133')
    a('ds_write_b128 v133, v[160:163]')
    a('ds_write_b128 v133, v[164:167] offset:16')
    lds_add(a, C_B, 133, 134)
    lds_wait(a, C_B, 4, 133, 134, 'FE_WB')
    a('v_lshrrev_b32 v133, 2, v91')
    a('s_lshl_b32 s64, s65, 9')
    a(f's_add_u32 s76, s64, {PARTB}')
    a('v_add_u32 v134, s76, v133')
    for j in range(4):
        a(f'ds_read_b32 v{160+2*j}, v134 offset:{2048*j}')
        a(f'ds_read_b32 v{161+2*j}, v134 offset:{2048*j+256}')
    a('s_waitcnt lgkmcnt(0)')
    pk(a, 'v_pk_add_f32', 160, 160, 162)
    pk(a, 'v_pk_add_f32', 164, 164, 166)
    pk(a, 'v_pk_add_f32', 160, 160, 164)
    a('s_lshl_b32 s77, s42, 11')
    a('s_add_u32 s76, s77, s64')
    a(f's_add_u32 s76, s76, {WS_ACC}')
    a('s_cmp_ge_u32 s2, 192')
    a('s_cbranch_scc1 FE_YB')
    lds_wait(a, C_G, 1, 134, 135, 'FE_WG')
    a('buffer_atomic_add_f32 v160, v133, s[28:31], s76 offen')
    a('buffer_atomic_add_f32 v161, v133, s[28:31], s76 offen offset:256')
    st(13)
    a.L('FE_YB')

    a.L('FE_YJ')
    X, N, T = 64, 80, 96
    a(f'v_mov_b32 v{T+6}, 0x3a800000')
    for d in range(8): unpack2(a, 148+d, X+2*d, X+2*d+1, 63)
    layernorm(a, X, N, T)
    a('s_waitcnt vmcnt(0)')
    lds_add(a, C_FIN, 12, 13)
    st(8)
    if PF_GU:
        a('s_cmp_lt_u32 s62, 4')
        a('s_cbranch_scc1 FE_NOPF')
        a(f's_load_dwordx4 s[44:47], s[0:1], {B_WG}')
        a('s_waitcnt lgkmcnt(0)')
        per_wg = PFROWS*7168//128
        per_w = per_wg//4
        nld = (per_w + 1023)//1024
        srd(a, 36, 44, PFROWS*7168)
        a('s_cmp_lt_u32 s2, 128')
        a('s_cselect_b32 s36, s44, s46')
        a('s_cselect_b32 s37, s45, s47')
        a('s_and_b32 s64, s2, 127')
        a(f's_mul_i32 s64, s64, {per_wg}')
        a('s_sub_u32 s65, s62, 4')
        a(f's_mul_i32 s65, s65, {per_w}')
        a('s_add_u32 s64, s64, s65')
        for i in range(nld):
            a(f'buffer_load_dwordx4 v[{176+4*i}:{179+4*i}], v146, s[36:39], s64 offen offset:{1024*(i%4)}')
            if i % 4 == 3: a('s_add_u32 s64, s64, 4096')
        if os.environ.get('WTILE', '0') == '1':
            for seg in range(7):
                a('v_and_b32 v232, 63, v0')
                a(f'v_add_u32 v232, {seg*64}, v232')
                a('v_mul_u32_u24 v233, 4682, v232')
                a('v_lshrrev_b32 v233, 16, v233')
                a('v_mul_u32_u24 v234, 14, v233')
                a('v_sub_u32 v234, v232, v234')
                a('v_lshlrev_b32 v233, 19, v233')
                a(f'v_lshl_add_u32 v{240+seg}, v234, 4, v233')
            srd(a, 72, 50, 32*32*16384, WS_WGT)
            for rl in range(2):
                a('s_and_b32 s64, s2, 127')
                a('s_lshl_b32 s64, s64, 3')
                a('s_sub_u32 s65, s62, 4')
                a('s_lshl_b32 s65, s65, 1')
                a('s_add_u32 s64, s64, s65')
                if rl: a('s_add_u32 s64, s64, 1')
                a('s_lshr_b32 s65, s64, 5')
                a('s_lshl_b32 s65, s65, 14')
                a('s_bfe_u32 s76, s64, 0x30002')
                a('s_mul_i32 s76, s76, 960')
                a('s_add_u32 s65, s65, s76')
                a('s_and_b32 s76, s64, 3')
                a('s_mul_i32 s76, s76, 224')
                a('s_add_u32 s65, s65, s76')
                a('s_lshr_b32 s76, s2, 7')
                a('s_mul_i32 s76, s76, 7680')
                a('s_add_u32 s65, s65, s76')
                for seg in range(7):
                    j = rl*7 + seg
                    a(f's_waitcnt vmcnt({13 if j < 1 else 13})') if False else None
                    a(f's_waitcnt vmcnt(13)')
                    a(f'buffer_store_dwordx4 v[{176+4*j}:{179+4*j}], v{240+seg}, s[72:75], s65 offen sc1')
        a.L('FE_NOPF')
    a('s_cmp_lg_u32 s62, 0')
    a('s_cbranch_scc1 FE_S1_SKIP')
    lds_wait(a, C_FIN, 8, 12, 13, 'FE_WFIN')
    a('v_mov_b32 v12, 0')
    a('s_lshl_b32 s82, s2, 3')
    a(f's_add_u32 s82, s82, {WS_FLAG+2048}')
    a('s_mov_b64 exec, 1')
    a('buffer_store_dwordx2 v[156:157], v12, s[28:31], s82 offen sc1')
    a('s_mov_b64 exec, -1')
    st(9)
    a('v_and_b32 v12, 63, v0')
    a('v_lshlrev_b32 v12, 5, v12')
    a(f's_mov_b32 s85, {WS_FLAG+2048}')
    def ld1():
        a('buffer_load_dwordx4 v[16:19], v12, s[28:31], s85 offen sc1')
        a('buffer_load_dwordx4 v[20:23], v12, s[28:31], s85 offen offset:16 sc1')
    def cmp1():
        a('v_cmp_eq_u64 vcc, v[16:17], v[156:157]')
        a('v_cmp_eq_u64 s[86:87], v[18:19], v[156:157]')
        a('v_cmp_eq_u64 s[88:89], v[20:21], v[156:157]')
        a('v_cmp_eq_u64 s[92:93], v[22:23], v[156:157]')
        a('s_and_b64 vcc, vcc, s[86:87]')
        a('s_and_b64 s[88:89], s[88:89], s[92:93]')
        a('s_and_b64 vcc, vcc, s[88:89]')
    poll_loop(a, 'FE_P1', ld1, cmp1)
    a.L('FE_S1_SKIP')
    a('s_barrier')
    st(10)
    a(f's_mul_i32 s60, s2, {Y2_BLK}')
    a('v_lshlrev_b32 v3, 5, v0')
    a('buffer_load_dwordx4 v[8:11], v3, s[12:15], s60 offen sc1')
    a('buffer_load_dwordx4 v[12:15], v3, s[12:15], s60 offen offset:16 sc1')
    a('v_lshlrev_b32 v5, 4, v0')
    a(f's_mov_b32 s64, {WS_ACC}')
    a('buffer_load_dwordx4 v[16:19], v5, s[28:31], s64 offen sc1')
    a(f's_mov_b32 s64, {WS_ACC+8192}')
    a('buffer_load_dwordx4 v[20:23], v5, s[28:31], s64 offen sc1')
    a(f's_mov_b32 s64, {WS_ACC+16384}')
    a('s_cmp_ge_u32 s62, 4')
    a('s_cbranch_scc1 FE_M2')
    a('buffer_load_dwordx4 v[24:27], v5, s[28:31], s64 offen sc1')
    a.L('FE_M2')
    a('v_and_b32 v2, 63, v0')
    a('v_lshlrev_b32 v4, 4, v2')
    srd(a, 20, 50, S*D*2, WS_X1)
    srd(a, 24, 50, S*D*2, WS_H2F)
    a('v_lshlrev_b32 v6, 2, v0')
    a('s_waitcnt vmcnt(0)')
    for r in range(8):
        sel = 's78' if r % 2 == 0 else 's79'
        a(f'v_perm_b32 v{104+r}, v{12+r//2}, v{8+r//2}, {sel}')
        a(f'ds_write_b32 v6, v{104+r} offset:{P2_T+r*2048}')
    a('v_lshlrev_b32 v7, 3, v0')
    def conv_chunk(b, plus1):
        a(f'v_cvt_pk_bf16_f32 v{b}, v{b}, v{b+1}')
        a(f'v_cvt_pk_bf16_f32 v{b+1}, v{b+2}, v{b+3}')
        if plus1:
            unpack2(a, b, 112, 113, 63); unpack2(a, b+1, 114, 115, 63)
            for r in range(112, 116): a(f'v_add_f32 v{r}, 1.0, v{r}')
            a(f'v_cvt_pk_bf16_f32 v{b}, v112, v113')
            a(f'v_cvt_pk_bf16_f32 v{b+1}, v114, v115')
    a('s_cmp_ge_u32 s62, 4')
    a('s_cbranch_scc1 FE_M3')
    conv_chunk(16, False)
    conv_chunk(24, True)
    a(f'ds_write_b64 v7, v[24:25] offset:{P2_M+8192}')
    a('s_branch FE_M4')
    a.L('FE_M3')
    conv_chunk(16, True)
    a.L('FE_M4')
    conv_chunk(20, False)
    a(f'ds_write_b64 v7, v[16:17] offset:{P2_M}')
    a(f'ds_write_b64 v7, v[20:21] offset:{P2_M+4096}')
    a('s_lshl_b32 s64, s62, 11')
    a('v_add_u32 v5, s64, v4')
    a('s_waitcnt lgkmcnt(0)')
    a('s_barrier')
    a(f'ds_read_b128 v[8:11], v5 offset:{P2_T}')
    a(f'ds_read_b128 v[12:15], v5 offset:{P2_T+1024}')
    for k in range(5):
        a(f'ds_read_b128 v[{24+8*k}:{24+8*k+3}], v4 offset:{P2_M+2048*k}')
        a(f'ds_read_b128 v[{24+8*k+4}:{24+8*k+7}], v4 offset:{P2_M+2048*k+1024}')
    PP, QQ = 128, 160
    def unpack_vec(src, dst):
        for d in range(8): unpack2(a, src+d, dst+2*d, dst+2*d+1, 63)
    a('s_waitcnt lgkmcnt(6)')
    unpack_vec(24+8*1, PP); unpack_vec(24+8*0, QQ)
    for e in range(0, 16, 2): pk(a, 'v_pk_fma_f32', N+e, N+e, PP+e, QQ+e)
    a('s_waitcnt lgkmcnt(0)')
    unpack_vec(24+8*2, QQ)
    unpack_vec(8, PP)
    for e in range(0, 16, 2): pk(a, 'v_pk_mul_f32', N+e, N+e, PP+e)
    for e in range(0, 16, 2): pk(a, 'v_pk_fma_f32', X+e, N+e, QQ+e, X+e)
    for d in range(8): a(f'v_cvt_pk_bf16_f32 v{8+d}, v{X+2*d}, v{X+2*d+1}')
    unpack_vec(8, X)
    a('buffer_store_dwordx4 v[8:11], v4, s[20:23], s69 offen' + WT)
    a('buffer_store_dwordx4 v[12:15], v4, s[20:23], s69 offen offset:1024' + WT)
    layernorm(a, X, N, T)
    unpack_vec(24+8*4, PP); unpack_vec(24+8*3, QQ)
    for e in range(0, 16, 2): pk(a, 'v_pk_fma_f32', N+e, N+e, PP+e, QQ+e)
    for d in range(8): a(f'v_cvt_pk_bf16_f32 v{16+d}, v{N+2*d}, v{N+2*d+1}')
    a('v_and_b32 v5, 7, v2')
    a('v_xor_b32 v5, s62, v5')
    a('v_lshlrev_b32 v5, 4, v5')
    a('v_lshl_add_u32 v5, v2, 7, v5')
    a(f'ds_write_b128 v5, v[16:19] offset:{P2_HS}')
    a(f'ds_write_b128 v5, v[20:23] offset:{P2_HS+8192}')
    a('v_lshlrev_b32 v5, 4, v0')
    a('v_lshrrev_b32 v6, 3, v0')
    a('v_xor_b32 v7, v0, v6')
    a('v_and_b32 v7, 7, v7')
    a('v_lshlrev_b32 v7, 4, v7')
    a('v_and_b32 v3, 3, v6')
    a('v_lshl_add_u32 v7, v3, 8, v7')
    a('v_lshrrev_b32 v3, 2, v6')
    a('v_lshl_add_u32 v7, v3, 11, v7')
    a('s_lshr_b32 s64, s2, 2')
    a('s_lshl_b32 s64, s64, 16')
    a('s_bfe_u32 s65, s2, 0x10001')
    a('s_lshl_b32 s65, s65, 10')
    a('s_add_u32 s64, s64, s65')
    a('s_and_b32 s65, s2, 1')
    a('s_lshl_b32 s65, s65, 7')
    a('s_add_u32 s64, s64, s65')
    a('s_add_u32 s65, s64, 32768')
    a('s_waitcnt lgkmcnt(0)')
    a('s_barrier')
    a(f'ds_read_b128 v[16:19], v5 offset:{P2_HS}')
    a(f'ds_read_b128 v[20:23], v5 offset:{P2_HS+8192}')
    a('s_waitcnt lgkmcnt(1)')
    a('buffer_store_dwordx4 v[16:19], v7, s[24:27], s64 offen' + WT)
    a('s_waitcnt lgkmcnt(0)')
    a('buffer_store_dwordx4 v[20:23], v7, s[24:27], s65 offen' + WT)
    st(11)
    if STAMP: a('s_waitcnt vmcnt(0)')
    st(12); st.flush()
    a.L('FE_END')
    a('s_endpgm')
    txt, n = a.finalize()
    return txt, 256
```

```python
from common import *

K2_T = 0; K2_HS = 16384; K2_LDS = 32768
PF_GU = os.environ.get('PFGU', '1') == '1'

def wave_reduce(a, v, sdst):
    for sh in ('row_shr:1', 'row_shr:2', 'row_shr:4', 'row_shr:8'):
        a(f'v_add_f32_dpp v{v}, v{v}, v{v} {sh} row_mask:0xf bank_mask:0xf')
    a(f'v_add_f32_dpp v{v}, v{v}, v{v} row_bcast:15 row_mask:0xa bank_mask:0xf')
    a(f'v_add_f32_dpp v{v}, v{v}, v{v} row_bcast:31 row_mask:0xc bank_mask:0xf')
    a(f'v_readlane_b32 s{sdst}, v{v}, 63')

def pk(a, op, d, x, y, z=None, mods=''):
    if z is None: a(f'{op} v[{d}:{d+1}], v[{x}:{x+1}], v[{y}:{y+1}] {mods}')
    else: a(f'{op} v[{d}:{d+1}], v[{x}:{x+1}], v[{y}:{y+1}], v[{z}:{z+1}] {mods}')

def layernorm(a, X, N, t):
    pk(a, 'v_pk_add_f32', t, X, X+2)
    pk(a, 'v_pk_add_f32', t+2, X+4, X+6)
    pk(a, 'v_pk_add_f32', t, t, X+8)
    pk(a, 'v_pk_add_f32', t+2, t+2, X+10)
    pk(a, 'v_pk_add_f32', t, t, X+12)
    pk(a, 'v_pk_add_f32', t+2, t+2, X+14)
    pk(a, 'v_pk_add_f32', t, t, t+2)
    a(f'v_add_f32 v{t}, v{t}, v{t+1}')
    wave_reduce(a, t, 70)
    a(f'v_mov_b32 v{t+4}, s70')
    a(f'v_mul_f32 v{t+4}, 0xba800000, v{t+4}')
    a(f'v_mov_b32 v{t+5}, v{t+4}')
    for e in range(0, 16, 2): pk(a, 'v_pk_add_f32', N+e, X+e, t+4)
    pk(a, 'v_pk_mul_f32', t, N, N)
    pk(a, 'v_pk_mul_f32', t+2, N+2, N+2)
    for e in range(4, 16, 4):
        pk(a, 'v_pk_fma_f32', t, N+e, N+e, t)
        pk(a, 'v_pk_fma_f32', t+2, N+e+2, N+e+2, t+2)
    pk(a, 'v_pk_add_f32', t, t, t+2)
    a(f'v_add_f32 v{t}, v{t}, v{t+1}')
    wave_reduce(a, t, 71)
    a(f'v_mov_b32 v{t+4}, s71')
    a(f'v_fmaak_f32 v{t+4}, v{t+4}, v{t+6}, 0x3727c5ac')
    a(f'v_rsq_f32 v{t+4}, v{t+4}')
    a(f'v_mov_b32 v{t+5}, v{t+4}')
    for e in range(0, 16, 2): pk(a, 'v_pk_mul_f32', N+e, N+e, t+4)

def gen_k2(name, faithful=False):
    a = Asm()
    kernel_begin(a, name)
    a('s_cmp_ge_u32 s2, 256')
    a('s_cbranch_scc1 K2_END')
    st = Stamps(a, 2, 62); st()
    a(f's_load_dwordx2 s[4:5], s[0:1], {A_Q}')
    a(f's_load_dwordx2 s[6:7], s[0:1], {A_WS}')
    if PF_GU: a(f's_load_dwordx4 s[28:31], s[0:1], {B_WG}')
    a('v_lshrrev_b32 v1, 6, v0')
    a('s_mov_b32 s63, 0xffff0000')
    a('v_readfirstlane_b32 s62, v1')
    a('v_and_b32 v2, 63, v0')
    a('s_lshl_b32 s60, s2, 14')
    a('v_lshlrev_b32 v3, 5, v0')
    a('v_lshlrev_b32 v4, 4, v2')
    a('s_lshl_b32 s61, s2, 3')
    a('s_add_u32 s61, s61, s62')
    a('s_lshl_b32 s61, s61, 11')
    a('s_waitcnt lgkmcnt(0)')
    srd(a, 12, 6, S*D*2, WS_Y2)
    srd(a, 8, 4, S*D*2)
    a('buffer_load_dwordx4 v[8:11], v3, s[12:15], s60 offen')
    a('buffer_load_dwordx4 v[12:15], v3, s[12:15], s60 offen offset:16')
    a('buffer_load_dwordx4 v[16:19], v4, s[8:11], s61 offen')
    a('buffer_load_dwordx4 v[20:23], v4, s[8:11], s61 offen offset:1024')
    srd(a, 16, 6, 6144*2, WS_MOD)
    for k in range(5):
        a(f's_mov_b32 s64, {k*2048}')
        a(f'buffer_load_dwordx4 v[{24+8*k}:{24+8*k+3}], v4, s[16:19], s64 offen')
        a(f'buffer_load_dwordx4 v[{24+8*k+4}:{24+8*k+7}], v4, s[16:19], s64 offen offset:1024')
    NPF = 0
    if PF_GU:
        srd(a, 32, 28, D*F*2)
        srd(a, 36, 30, D*F*2)
        a('s_and_b32 s64, s2, 127')
        a('s_mul_i32 s64, s64, 57344')
        a('s_mul_i32 s65, s62, 7168')
        a('s_add_u32 s64, s64, s65')
        a('s_cmp_lt_u32 s2, 128')
        a('s_cselect_b32 s32, s32, s36')
        a('s_cselect_b32 s33, s33, s37')
        for i in range(7):
            a(f'buffer_load_dwordx4 v[{112+4*(i%4)}:{115+4*(i%4)}], v4, s[32:35], s64 offen offset:{1024*(i%4)}')
            if i == 3: a('s_add_u32 s64, s64, 4096')
        NPF = 7
    srd(a, 20, 6, S*D*2, WS_X1)
    srd(a, 24, 6, S*D*2, WS_H2F)
    a('s_mov_b32 s65, 0x05040100')
    a('s_mov_b32 s66, 0x07060302')
    a('v_lshlrev_b32 v5, 2, v0')
    T = 96
    a(f'v_mov_b32 v{T+6}, 0x3a800000')
    a(f's_waitcnt vmcnt({12+NPF})')
    st()
    for r in range(8):
        sel = 's65' if r % 2 == 0 else 's66'
        a(f'v_perm_b32 v{64+r}, v{12+r//2}, v{8+r//2}, {sel}')
        a(f'ds_write_b32 v5, v{64+r} offset:{K2_T+r*2048}')
    a('s_lshl_b32 s64, s62, 11')
    a('v_add_u32 v5, s64, v4')
    X, N, P = 64, 80, 104
    a('s_waitcnt lgkmcnt(0)')
    a('s_barrier')
    a(f'ds_read_b128 v[8:11], v5 offset:{K2_T}')
    a(f'ds_read_b128 v[12:15], v5 offset:{K2_T+1024}')
    a(f's_waitcnt vmcnt({10+NPF})')
    for d in range(8): unpack2(a, 16+d, X+2*d, X+2*d+1, 63)
    layernorm(a, X, N, T)
    a(f's_waitcnt vmcnt({NPF}) lgkmcnt(0)')
    st()
    Q = 128
    def unpack_vec(src, dst):
        for d in range(8): unpack2(a, src+d, dst+2*d, dst+2*d+1, 63)
    PP = 128
    QQ = 144
    unpack_vec(24+8*1, PP); unpack_vec(24+8*0, QQ)
    for e in range(0, 16, 2): pk(a, 'v_pk_fma_f32', N+e, N+e, PP+e, QQ+e)
    unpack_vec(8, PP); unpack_vec(24+8*2, QQ)
    for e in range(0, 16, 2): pk(a, 'v_pk_mul_f32', N+e, N+e, PP+e)
    for e in range(0, 16, 2): pk(a, 'v_pk_fma_f32', X+e, N+e, QQ+e, X+e)
    for d in range(8): a(f'v_cvt_pk_bf16_f32 v{8+d}, v{X+2*d}, v{X+2*d+1}')
    unpack_vec(8, X)
    a('buffer_store_dwordx4 v[8:11], v4, s[20:23], s61 offen' + WT)
    a('buffer_store_dwordx4 v[12:15], v4, s[20:23], s61 offen offset:1024' + WT)
    layernorm(a, X, N, T)
    unpack_vec(24+8*4, PP); unpack_vec(24+8*3, QQ)
    for e in range(0, 16, 2): pk(a, 'v_pk_fma_f32', N+e, N+e, PP+e, QQ+e)
    for d in range(8): a(f'v_cvt_pk_bf16_f32 v{16+d}, v{N+2*d}, v{N+2*d+1}')
    st()
    a('v_and_b32 v5, 7, v2')
    a('v_xor_b32 v5, s62, v5')
    a('v_lshlrev_b32 v5, 4, v5')
    a('v_lshl_add_u32 v5, v2, 7, v5')
    a(f'ds_write_b128 v5, v[16:19] offset:{K2_HS}')
    a(f'ds_write_b128 v5, v[20:23] offset:{K2_HS+8192}')
    a('v_lshlrev_b32 v5, 4, v0')
    a('v_lshrrev_b32 v6, 3, v0')
    a('v_xor_b32 v7, v0, v6')
    a('v_and_b32 v7, 7, v7')
    a('v_lshlrev_b32 v7, 4, v7')
    a('v_and_b32 v3, 3, v6')
    a('v_lshl_add_u32 v7, v3, 8, v7')
    a('v_lshrrev_b32 v3, 2, v6')
    a('v_lshl_add_u32 v7, v3, 11, v7')
    a('s_lshr_b32 s64, s2, 2')
    a('s_lshl_b32 s64, s64, 16')
    a('s_bfe_u32 s65, s2, 0x10001')
    a('s_lshl_b32 s65, s65, 10')
    a('s_add_u32 s64, s64, s65')
    a('s_and_b32 s65, s2, 1')
    a('s_lshl_b32 s65, s65, 7')
    a('s_add_u32 s64, s64, s65')
    a('s_add_u32 s65, s64, 32768')
    a('s_waitcnt lgkmcnt(0)')
    a('s_barrier')
    a(f'ds_read_b128 v[16:19], v5 offset:{K2_HS}')
    a(f'ds_read_b128 v[20:23], v5 offset:{K2_HS+8192}')
    a('s_waitcnt lgkmcnt(1)')
    a('buffer_store_dwordx4 v[16:19], v7, s[24:27], s64 offen' + WT)
    a('s_waitcnt lgkmcnt(0)')
    a('buffer_store_dwordx4 v[20:23], v7, s[24:27], s65 offen' + WT)
    if STAMP: a('s_waitcnt vmcnt(0)')
    st(); st.flush(164)
    a.L('K2_END')
    a('s_endpgm')
    txt, n = a.finalize()
    return txt, 168 if STAMP else 160
```

```python
from common import *

WTILE = os.environ.get('WTILE', '0') == '1'
K3_WB = 960; K3_MAT = 7680
K3_KS = 16384 if WTILE else 15360
K3_STAGE = 2*K3_KS
K3_LDS = 4*K3_STAGE
PD = int(os.environ.get('PD', '5'))
X3 = os.environ.get('X3', '')
REPACK = os.environ.get('REPACK', 'mid')
RP_IT = int(os.environ.get('RP_IT', '3'))
STAG = os.environ.get('STAG', '0') == '1'
POS_A = [int(x) for x in os.environ.get('POS_A', '1,2,4,5').split(',')]
POS_B = [int(x) for x in os.environ.get('POS_B', '7,8,10,11').split(',')]

def gen_k3(name, faithful=False):
    a = Asm()
    kernel_begin(a, name)
    a('s_cmp_ge_u32 s2, 256')
    a('s_cbranch_scc1 K3_END')
    stp = Stamps(a, 1, 62); stp()
    a(f's_load_dwordx4 s[4:7], s[0:1], {B_WG}')
    a(f's_load_dwordx2 s[28:29], s[0:1], {A_WS}')
    a(f's_load_dwordx2 s[30:31], s[0:1], {B_WD}')
    a('v_lshrrev_b32 v1, 6, v0')
    a('s_mov_b32 s63, 0xffff0000')
    a('v_readfirstlane_b32 s62, v1')
    a('v_and_b32 v2, 63, v0')
    a('s_and_b32 s50, s2, 7')
    a('s_lshr_b32 s51, s2, 3')
    a('s_and_b32 s52, s50, 1')
    a('s_lshl_b32 s52, s52, 2')
    a('s_and_b32 s53, s51, 3')
    a('s_add_u32 s52, s52, s53')
    a('s_lshr_b32 s53, s50, 1')
    a('s_lshl_b32 s53, s53, 3')
    a('s_lshr_b32 s54, s51, 2')
    a('s_add_u32 s53, s53, s54')
    VW, VX, VA0, VA1, VW2 = 3, 4, 5, 6, 9
    if WTILE:
        a('s_lshl_b32 s55, s53, 19')
        a('s_lshl_b32 s57, s62, 11')
        a('s_add_u32 s55, s55, s57')
        a('v_lshlrev_b32 v7, 4, v2')
        a(f'v_add_u32 v{VW}, s55, v7')
        a(f'v_add_u32 v{VW2}, 1024, v{VW}')
        a('v_bfrev_b32 v8, 1')
        a('s_cmp_eq_u32 s62, 7')
        a('s_cselect_b32 s57, -1, 0')
        a('v_mov_b32 v7, s57')
        a('v_cmp_ne_u32 vcc, 0, v7')
        a(f'v_cndmask_b32 v{VW2}, v{VW2}, v8, vcc')
        a('s_lshl_b32 s58, s62, 11')
    else:
        a('v_mul_u32_u24 v7, 4682, v2')
        a('v_lshrrev_b32 v7, 16, v7')
        a('v_mul_u32_u24 v8, 14, v7')
        a('v_sub_u32 v8, v2, v8')
        a('s_lshl_b32 s55, s62, 2')
        a('v_add_u32 v7, s55, v7')
        a('v_mul_u32_u24 v7, 7168, v7')
        a('v_lshl_add_u32 v7, v8, 4, v7')
        a('s_mul_i32 s55, s53, 224')
        a(f'v_add_u32 v{VW}, s55, v7')
        a(f's_mul_i32 s58, s62, {K3_WB}')
        a('s_mov_b32 s40, 0xffffffff')
        a('s_mov_b32 s41, 0x00ffffff')
    a('s_lshl_b32 s56, s52, 3')
    a('s_add_u32 s56, s56, s62')
    a('s_lshl_b32 s57, s56, 16')
    a('v_lshlrev_b32 v7, 4, v2')
    a(f'v_add_u32 v{VX}, s57, v7')
    a('v_lshrrev_b32 v7, 4, v2')
    a(f'v_mul_u32_u24 v7, {2*K3_WB}, v7')
    a('v_bfe_u32 v8, v2, 2, 2')
    a('v_mul_u32_u24 v8, 224, v8')
    a('v_add_u32 v7, v7, v8')
    a('v_and_b32 v8, 3, v2')
    a(f'v_lshl_add_u32 v{VA0}, v8, 3, v7')
    a(f'v_add_u32 v{VA1}, {2*K3_STAGE}, v{VA0}')
    a('s_waitcnt lgkmcnt(0)')
    if WTILE:
        srd(a, 8, 28, 32*32*16384, WS_WGT)
        srd(a, 12, 28, 32*32*16384, WS_WGT)
    else:
        srd(a, 8, 4, D*F*2)
        srd(a, 12, 6, D*F*2)
    srd(a, 16, 28, S*D*2, WS_H2F)
    srd(a, 20, 28, S*D*2, WS_H2F)
    XR, WR, ACC = 64, 96, 128
    s_xoff, s_woff = 44, 45
    def xload1(slot, i, srd_):
        a(f'buffer_load_dwordx4 v[{XR+8*slot+4*i}:{XR+8*slot+4*i+3}], v{VX}, s[{srd_}:{srd_+3}], s{s_xoff} offen' + (' offset:1024' if i else ''))
        if i and 'x' not in X3: a(f's_add_u32 s{s_xoff}, s{s_xoff}, 2048')
    def xload(slot, srd_):
        xload1(slot, 0, srd_); xload1(slot, 1, srd_)
    def wdma1(stage_slot, ks, m, alt=False):
        if WTILE:
            a(f's_add_u32 m0, s58, {stage_slot*K3_STAGE + ks*K3_KS + 1024*m}')
            a('s_nop 0')
            a(f'buffer_load_dwordx4 v{VW2 if m else VW}, {"s[12:15]" if alt else "s[8:11]"}, s{s_woff} offen lds')
            if m: a(f's_add_u32 s{s_woff}, s{s_woff}, 16384')
        else:
            a(f's_add_u32 m0, s58, {stage_slot*K3_STAGE + ks*K3_KS + K3_MAT*m}')
            a('s_mov_b64 exec, s[40:41]')
            a(f'buffer_load_dwordx4 v{VW}, {"s[12:15]" if m else "s[8:11]"}, s{s_woff} offen lds')
            a('s_mov_b64 exec, -1')
            if m and 'w' not in X3: a(f's_add_u32 s{s_woff}, s{s_woff}, {32*7168}')
    def wdma(stage_slot, ks):
        wdma1(stage_slot, ks, 0); wdma1(stage_slot, ks, 1)
    a(f's_mov_b32 s{s_xoff}, 0')
    a(f's_mov_b32 s{s_woff}, 0')
    wdma(0, 0); xload(0, 16)
    a('s_barrier')
    wdma(0, 1)
    a('s_barrier')
    wdma(1, 0); wdma(1, 1)
    srd(a, 24, 28, S*F*2, WS_HF)
    srd(a, 32, 30, F*D*2)
    srd(a, 36, 28, F*D*2, WS_WDT)
    a('s_mul_i32 s73, s2, 28672')
    a('s_lshl_b32 s74, s62, 12')
    a('s_add_u32 s73, s73, s74')
    a('v_lshlrev_b32 v12, 4, v2')
    a('v_lshrrev_b32 v10, 3, v2')
    a('s_mov_b32 s74, 458752')
    a('v_mul_lo_u32 v10, s74, v10')
    a('v_and_b32 v13, 7, v2')
    a('v_lshl_add_u32 v10, v13, 4, v10')
    def repack_stores(flags):
        for i in range(4):
            a(f's_lshl_b32 s74, s62, 2')
            a(f's_add_u32 s74, s74, {i}')
            a('s_lshr_b32 s75, s74, 1')
            a('s_mul_i32 s76, s2, 14')
            a('s_add_u32 s75, s75, s76')
            a('s_and_b32 s74, s74, 1')
            a('s_lshl_b32 s74, s74, 3')
            a('s_mul_i32 s74, s74, 458752')
            a('s_lshl_b32 s76, s75, 7')
            a('s_add_u32 s74, s74, s76')
            a('s_bfe_u32 s76, s75, 0x10001')
            a('s_bfe_u32 s77, s75, 0x10003')
            a('s_lshl_b32 s77, s77, 1')
            a('s_or_b32 s76, s76, s77')
            a('s_lshl_b32 s76, s76, 5')
            a('v_xor_b32 v13, s76, v10')
            a(f'buffer_store_dwordx4 v[{48+4*i}:{51+4*i}], v13, s[36:39], s74 offen' + flags)
    for r in range(112): a(f'v_mov_b32 v{ACC+r}, 0')
    def frag_addr(kstep_in_body, f, h):
        kb = kstep_in_body % 8
        st, ks = kb >> 1, kb & 1
        jt, m = f >> 1, f & 1
        base = VA0 if st < 2 else VA1
        off = (st & 1)*K3_STAGE + ks*K3_KS + m*K3_MAT + h*K3_WB + 32*jt
        return base, off
    def rd(kb, f, h):
        base, off = frag_addr(kb, f, h)
        sl = f % 7
        a(f'ds_read_b64_tr_b16 v[{WR+4*sl+2*h}:{WR+4*sl+2*h+1}], v{base} offset:{off}')
    stp()
    a('s_waitcnt vmcnt(0)')
    a('s_barrier')
    stp()
    xload(1, 16); wdma(2, 0)
    xload(2, 16); wdma(2, 1)
    for f in range(PD):
        rd(0, f, 0); rd(0, f, 1)
    a('s_mov_b32 s46, 4')
    a('s_lshr_b32 s47, s62, 2')
    if os.environ.get('PRIO'):
        a('s_cmp_eq_u32 s47, 0')
        a('s_cbranch_scc1 K3_NOPRIO')
        a('s_setprio 1')
        a.L('K3_NOPRIO')
    a('s_branch K3_ENTRY')
    a.L('K3_LOOP')
    lab = [0]
    def guarded(half, fn):
        if half is None: fn(); return
        lab[0] += 1; L = f'K3_G{lab[0]}'
        a(f's_cmp_lg_u32 s47, {half}')
        a(f's_cbranch_scc1 {L}')
        fn()
        a.L(L)
    for kb in range(8):
        st, ks = kb >> 1, kb & 1
        if ks == 0:
            a('s_waitcnt vmcnt(8)')
            a('s_barrier')
            if kb == 0:
                a.L('K3_ENTRY')
                a('s_cmp_eq_u32 s46, 1')
                a(f's_cselect_b32 s22, 0, {S*D*2}')
                if WTILE: a(f's_cselect_b32 s14, 0, {32*32*16384}')
        else:
            a('s_waitcnt vmcnt(10)')
        if REPACK == 'mid' and kb == 2:
            a(f's_cmp_lg_u32 s46, {RP_IT}')
            a('s_cbranch_scc1 K3_NORL')
            a('s_cmp_eq_u32 s62, 7')
            a('s_cbranch_scc1 K3_NORL')
            for i in range(4):
                a(f'buffer_load_dwordx4 v[{48+4*i}:{51+4*i}], v12, s[32:35], s73 offen offset:{1024*i}')
            a.L('K3_NORL')
        if REPACK == 'mid' and kb == 6:
            a(f's_cmp_lg_u32 s46, {RP_IT}')
            a('s_cbranch_scc1 K3_NORS')
            a('s_cmp_eq_u32 s62, 7')
            a('s_cbranch_scc1 K3_NORS')
            repack_stores('')
            a.L('K3_NORS')
        xs = kb % 4
        xn = (kb + 3) % 4
        xsrd = 16 if kb + 3 < 8 else 20
        ops = [lambda: xload1(xn, 0, xsrd), lambda: xload1(xn, 1, xsrd),
               lambda: wdma1((st + 3) % 4, ks, 0, st != 0), lambda: wdma1((st + 3) % 4, ks, 1, st != 0)]
        for f in range(14):
            jt, m = f >> 1, f & 1
            sl = f % 7
            a(f's_waitcnt lgkmcnt({2*(PD-1)})')
            nf = f + PD
            nkb, nf2 = (kb, nf) if nf < 14 else (kb + 1, nf - 14)
            for tt in range(2):
                ac = ACC + ((m*7 + jt)*2 + tt)*4
                if 'M' not in X3: a(f'v_mfma_f32_16x16x32_bf16 v[{ac}:{ac+3}], v[{WR+4*sl}:{WR+4*sl+3}], v[{XR+8*xs+4*tt}:{XR+8*xs+4*tt+3}], v[{ac}:{ac+3}]')
                if 'R' not in X3: rd(nkb, nf2, tt)
            if 'V' not in X3:
                for k_, op in enumerate(ops):
                    if STAG:
                        if f == POS_A[k_]: guarded(0, op)
                        if f == POS_B[k_]: guarded(1, op)
                    elif f == POS_A[k_]: op()
    a('s_sub_u32 s46, s46, 1')
    a('s_cmp_lg_u32 s46, 0')
    a('s_cbranch_scc1 K3_LOOP')
    a('s_waitcnt lgkmcnt(0)')
    stp()
    a('v_and_b32 v7, 15, v2')
    a('v_lshlrev_b32 v7, 4, v7')
    a('v_bfe_u32 v8, v2, 4, 1')
    a('v_lshl_add_u32 v7, v8, 10, v7')
    a('v_lshrrev_b32 v8, 5, v2')
    a('v_lshl_add_u32 v7, v8, 8, v7')
    a('s_mul_i32 s57, s56, 229376')
    a('v_add_u32 v7, s57, v7')
    a('s_mul_i32 s59, s53, 7')
    import struct
    c1 = -2*1.4426950408889634*0.7978845608028654
    c2 = c1*0.044715
    f2u = lambda x: struct.unpack('<I', struct.pack('<f', x))[0]
    a(f's_mov_b32 s66, {f2u(c2):#x}')
    a(f's_mov_b32 s67, {f2u(c2):#x}')
    a(f'v_mov_b32 v8, {f2u(c1):#x}')
    a(f'v_mov_b32 v9, {f2u(c1):#x}')
    a('s_nop 7')
    T = 16
    for jt in range(7):
        ob = 32 + 4*(jt % 4)
        for tt in range(2):
            G = ACC + ((0*7 + jt)*2 + tt)*4
            U = ACC + ((1*7 + jt)*2 + tt)*4
            for rp in range(2):
                g0, u0 = G+2*rp, U+2*rp
                t = T + 2*((2*tt+rp) % 4)
                a(f'v_pk_mul_f32 v[{t}:{t+1}], v[{g0}:{g0+1}], v[{g0}:{g0+1}]')
                a(f'v_pk_fma_f32 v[{t}:{t+1}], v[{t}:{t+1}], s[66:67], v[8:9]')
                a(f'v_pk_mul_f32 v[{t}:{t+1}], v[{t}:{t+1}], v[{g0}:{g0+1}]')
                a(f'v_exp_f32 v{t}, v{t}')
                a(f'v_exp_f32 v{t+1}, v{t+1}')
                a(f'v_pk_mul_f32 v[{g0}:{g0+1}], v[{g0}:{g0+1}], v[{u0}:{u0+1}]')
                a(f'v_pk_add_f32 v[{t}:{t+1}], v[{t}:{t+1}], 1.0 op_sel_hi:[1,0]')
                a(f'v_rcp_f32 v{t}, v{t}')
                a(f'v_rcp_f32 v{t+1}, v{t+1}')
                a(f'v_pk_mul_f32 v[{g0}:{g0+1}], v[{g0}:{g0+1}], v[{t}:{t+1}]')
                a(f'v_cvt_pk_bf16_f32 v{ob+2*tt+rp}, v{g0}, v{g0+1}')
        a(f'v_permlane16_swap_b32 v{ob}, v{ob+2}')
        a(f'v_permlane16_swap_b32 v{ob+1}, v{ob+3}')
        a(f's_add_u32 s60, s59, {jt}')
        a('s_lshr_b32 s61, s60, 1')
        a('s_lshl_b32 s61, s61, 11')
        a('s_and_b32 s60, s60, 1')
        a('s_lshl_b32 s60, s60, 9')
        a('s_add_u32 s60, s60, s61')
        a(f'buffer_store_dwordx4 v[{ob}:{ob+3}], v7, s[24:27], s60 offen' + WT)
    stp()
    if STAMP: a('s_waitcnt vmcnt(0)')
    stp(); stp.flush()
    a.L('K3_END')
    a('s_endpgm')
    txt, n = a.finalize()
    return txt, 256 if STAMP else 240
```

```python
from common import *

K4_STAGE = 16384
NS4 = 4
DIST4 = int(os.environ.get('DIST4', '2'))
K4_LDS = NS4*16384
PF4ON = os.environ.get('PF4ON', '0') == '1'
PD4 = 3

X4 = os.environ.get('X4', '')
def gen_k4(name, faithful=True):
    a = Asm()
    kernel_begin(a, name)
    a('s_cmp_ge_u32 s2, 256')
    a('s_cbranch_scc1 K4_END')
    stp = Stamps(a, 2, 62); stp()
    a(f's_load_dwordx2 s[4:5], s[0:1], {B_WD}')
    a(f's_load_dwordx2 s[6:7], s[0:1], {A_OUT}')
    a(f's_load_dwordx2 s[28:29], s[0:1], {A_WS}')
    a('v_lshrrev_b32 v1, 6, v0')
    a('s_mov_b32 s63, 0xffff0000')
    a('v_readfirstlane_b32 s62, v1')
    a('v_and_b32 v2, 63, v0')
    a('s_and_b32 s50, s2, 7')
    a('s_lshr_b32 s51, s2, 3')
    a('s_and_b32 s52, s50, 3')
    a('s_lshl_b32 s52, s52, 2')
    a('s_and_b32 s53, s51, 3')
    a('s_add_u32 s52, s52, s53')
    a('s_lshr_b32 s53, s50, 2')
    a('s_lshl_b32 s53, s53, 3')
    a('s_lshr_b32 s54, s51, 2')
    a('s_add_u32 s53, s53, s54')
    a('s_waitcnt lgkmcnt(0)')
    srd(a, 8, 28, F*D*2, WS_WDT)
    srd(a, 12, 6, S*D*2)
    srd(a, 16, 28, S*F*2, WS_HF)
    srd(a, 20, 28, S*D*2, WS_X1)
    srd(a, 24, 28, 6144*4, WS_ACC)
    a('s_and_b32 s55, s62, 3')
    a('s_lshr_b32 s56, s62, 2')
    VW0, VW1, VH = 3, 4, 5
    VA = 16
    a('s_mul_i32 s57, s53, 458752')
    a('s_lshl_b32 s59, s62, 11')
    a('s_add_u32 s57, s57, s59')
    a('v_lshlrev_b32 v10, 4, v2')
    a(f'v_add_u32 v{VW0}, s57, v10')
    a(f'v_add_u32 v{VW1}, 1024, v{VW0}')
    a('s_lshl_b32 s57, s52, 2')
    a('s_add_u32 s57, s57, s55')
    a('s_mul_i32 s57, s57, 229376')
    a('s_lshl_b32 s58, s56, 12')
    a('s_add_u32 s57, s57, s58')
    a('v_lshlrev_b32 v10, 4, v2')
    a(f'v_add_u32 v{VH}, s57, v10')
    a('v_lshrrev_b32 v10, 4, v2')
    a('v_bfe_u32 v11, v2, 2, 2')
    a('v_lshl_add_u32 v12, v10, 3, v11')
    a('v_lshlrev_b32 v12, 7, v12')
    a('v_lshrrev_b32 v11, 1, v11')
    a('v_and_b32 v10, 1, v10')
    a('v_lshl_or_b32 v11, v10, 1, v11')
    a('v_lshl_add_u32 v12, v11, 5, v12')
    a('v_and_b32 v11, 3, v2')
    a('v_lshl_add_u32 v12, v11, 3, v12')
    a('s_lshl_b32 s58, s56, 13')
    a('v_add_u32 v12, s58, v12')
    for jt in range(4): a(f'v_xor_b32 v{VA+jt}, {jt<<5}, v12')
    a('s_lshl_b32 s58, s62, 11')
    a('s_and_b32 s60, s50, 3')
    a('s_lshl_b32 s60, s60, 4')
    a('s_lshr_b32 s61, s51, 1')
    a('s_add_u32 s60, s60, s61')
    a('s_mul_i32 s60, s60, 229376')
    a('s_and_b32 s61, s51, 1')
    a('s_lshl_b32 s61, s61, 12')
    a('s_add_u32 s60, s60, s61')
    a('s_lshl_b32 s61, s62, 9')
    a('s_add_u32 s60, s60, s61')
    a('v_lshlrev_b32 v24, 7, v2')
    a('v_add_u32 v25, s60, v24')
    a('v_bfrev_b32 v26, 1')
    a('v_cmp_gt_u32 vcc, 4, v2')
    a('v_cndmask_b32 v25, v26, v25, vcc')
    a('s_lshr_b32 s60, s50, 2')
    a('s_lshl_b32 s60, s60, 3')
    a('s_lshr_b32 s64, s51, 2')
    a('s_add_u32 s60, s60, s64')
    a('s_mul_i32 s60, s60, 458752')
    a('s_and_b32 s64, s51, 3')
    a('s_lshl_b32 s64, s64, 12')
    a('s_add_u32 s60, s60, s64')
    a('s_add_u32 s60, s60, s61')
    a('v_add_u32 v27, s60, v24')
    a('v_cndmask_b32 v27, v26, v27, vcc')
    PFS = int(os.environ.get('PF4', '4'))
    a(f's_mov_b32 s66, {PFS-1}')
    HR, WR, ACC = 32, 96, 128
    s_hoff, s_woff = 44, 45
    def hload1(slot, i, srd_=16):
        if 'H' in X4: srd_ = 36
        a(f'buffer_load_dwordx4 v[{HR+16*slot+4*i}:{HR+16*slot+4*i+3}], v{VH}, s[{srd_}:{srd_+3}], s{s_hoff} offen offset:{1024*i}')
        if i == 3: a(f's_add_u32 s{s_hoff}, s{s_hoff}, 8192')
    def wdma1(slot, i, alt=False):
        WS_ = 's[36:39]' if 'W' in X4 else ('s[40:43]' if alt else 's[8:11]')
        a(f's_add_u32 m0, s58, {slot*K4_STAGE+1024*i}')
        a('s_nop 0')
        a(f'buffer_load_dwordx4 v{VW0 if i == 0 else VW1}, {WS_}, s{s_woff} offen' + nt('d') + ' lds')
        if i == 1: a(f's_add_u32 s{s_woff}, s{s_woff}, 16384')
    a(f's_mov_b32 s{s_hoff}, 0')
    a(f's_mov_b32 s{s_woff}, 0')
    srd(a, 32, 28, S*F*2, WS_HF)
    srd(a, 36, 28, 0, WS_HF)
    srd(a, 40, 28, F*D*2, WS_WDT)
    srd(a, 68, 28, S*F*2, WS_HF)
    srd(a, 72, 28, F*D*2, WS_WDT)
    def pf4():
        a('s_cmp_lt_u32 s66, 28')
        a(f's_cselect_b32 s70, {S*F*2}, 0')
        a(f's_cselect_b32 s74, {F*D*2}, 0')
        a('s_lshl_b32 s64, s66, 13')
        a('buffer_load_dword v28, v25, s[68:71], s64 offen')
        a('s_lshl_b32 s64, s66, 14')
        a('buffer_load_dword v28, v27, s[72:75], s64 offen')
        a('s_add_u32 s66, s66, 1')
    for i in range(DIST4):
        if PF4ON and i >= 1: pf4()
        wdma1(i, 0); wdma1(i, 1)
        for j in range(4): hload1(i, j)
        if i == 0: a('s_barrier')
    for r in range(32): a(f'v_mov_b32 v{ACC+r}, 0')
    def rd(st, f, h):
        st %= NS4
        ks, jt = f >> 2, f & 3
        off = st*K4_STAGE + ks*4096 + h*512
        sl = f % 8
        a(f'ds_read_b64_tr_b16 v[{WR+4*sl+2*h}:{WR+4*sl+2*h+1}], v{VA+jt} offset:{off}')
    stp()
    a(f's_mov_b32 s46, {28//NS4}')
    a.L('K4_LOOP')
    a('s_cmp_eq_u32 s46, 1')
    a(f's_cselect_b32 s34, 0, {S*F*2}')
    a(f's_cselect_b32 s42, 0, {F*D*2}')
    for st in range(NS4):
        a(f's_waitcnt vmcnt({(8 if PF4ON else 6)*(DIST4-1)})')
        a('s_barrier')
        if PF4ON: pf4()
        for f in range(PD4):
            rd(st, f, 0); rd(st, f, 1)
        pslot = (st + DIST4) % NS4
        hs = 16 if st + DIST4 < NS4 else 32
        vm = [('w', 0), ('h', 0), ('h', 1), ('w', 1), ('h', 2), ('h', 3)]
        def vmem(k):
            kind, i = vm[k]
            if kind == 'w': wdma1(pslot, i, hs == 32)
            else: hload1(pslot, i, hs)
        vmem(0)
        for f in range(8):
            ks, jt = f >> 2, f & 3
            sl = f % 8
            outstanding = 2*(min(f + PD4, 8) - f - 1)
            a(f's_waitcnt lgkmcnt({outstanding})')
            nf = f + PD4
            for tt in range(2):
                ac = ACC + (jt*2 + tt)*4
                hb = HR + 16*st + 8*ks + 4*tt
                if 'M' not in X4: a(f'v_mfma_f32_16x16x32_bf16 v[{ac}:{ac+3}], v[{WR+4*sl}:{WR+4*sl+3}], v[{hb}:{hb+3}], v[{ac}:{ac+3}]')
                if nf < 8 and 'R' not in X4: rd(st, nf, tt)
            if f < 5: vmem(f + 1)
    a('s_sub_u32 s46, s46, 1')
    a('s_cmp_lg_u32 s46, 0')
    a('s_cbranch_scc1 K4_LOOP')
    a('s_waitcnt vmcnt(0) lgkmcnt(0)')
    a('s_barrier')
    stp()
    a('v_and_b32 v10, 15, v2')
    a('v_lshrrev_b32 v11, 4, v2')
    a('v_xor_b32 v11, v11, v10')
    a('v_lshlrev_b32 v11, 4, v11')
    a('v_lshl_add_u32 v11, v10, 8, v11')
    a('s_lshl_b32 s57, s56, 15')
    a('s_lshl_b32 s59, s55, 13')
    a('s_add_u32 s57, s57, s59')
    a('v_add_u32 v11, s57, v11')
    for jt in range(4):
        a(f'v_xor_b32 v12, {jt*64}, v11')
        for tt in range(2):
            ac = ACC + (jt*2 + tt)*4
            a(f'ds_write_b128 v12, v[{ac}:{ac+3}] offset:{tt*4096}')
    a('v_lshrrev_b32 v13, 3, v0')
    a('v_and_b32 v14, 7, v0')
    a('s_lshl_b32 s57, s52, 7')
    a('v_add_u32 v15, s57, v13')
    a('v_lshlrev_b32 v15, 11, v15')
    a('v_lshl_add_u32 v15, v14, 4, v15')
    a('s_lshl_b32 s57, s53, 7')
    a('v_add_u32 v15, s57, v15')
    a(f's_mov_b32 s59, {64*2048}')
    a('buffer_load_dwordx4 v[16:19], v15, s[20:23], 0 offen')
    a('buffer_load_dwordx4 v[20:23], v15, s[20:23], s59 offen')
    a('v_lshlrev_b32 v24, 5, v14')
    a('s_lshl_b32 s57, s57, 1')
    a(f's_add_u32 s57, s57, {5*4096}')
    a('buffer_load_dwordx4 v[32:35], v24, s[24:27], s57 offen')
    a('buffer_load_dwordx4 v[36:39], v24, s[24:27], s57 offen offset:16')
    a('s_waitcnt lgkmcnt(0)')
    a('s_barrier')
    a('v_and_b32 v24, 15, v13')
    a('v_lshlrev_b32 v25, 1, v14')
    a('v_xor_b32 v25, v25, v24')
    a('v_lshlrev_b32 v25, 4, v25')
    a('v_lshl_add_u32 v25, v13, 8, v25')
    a('v_xor_b32 v26, 16, v25')
    GB = list(range(32, 40))
    a('s_waitcnt vmcnt(0)')
    for d in range(4): rnd2(a, GB[2*d], GB[2*d+1], 28, 63, True)
    if os.environ.get('EPS'):
        import struct
        ev = struct.unpack('<I', struct.pack('<f', 1.0+float(os.environ['EPS'])))[0]
        for e in range(8): a(f'v_mul_f32 v{GB[e]}, {ev:#x}, v{GB[e]}')
    for j in range(2):
        o = j*64*256
        a(f'ds_read_b128 v[40:43], v25 offset:{o}')
        a(f'ds_read_b128 v[44:47], v26 offset:{o}')
        a(f'ds_read_b128 v[48:51], v25 offset:{o+32768}')
        a(f'ds_read_b128 v[52:55], v26 offset:{o+32768}')
        a('s_waitcnt lgkmcnt(0)')
        for e in range(8): a(f'v_add_f32 v{40+e}, v{40+e}, v{48+e}')
        for e in range(0, 8, 2): rnd2(a, 40+e, 41+e, 56, 63, True)
        for e in range(8): a(f'v_mul_f32 v{40+e}, v{40+e}, v{GB[e]}')
        for e in range(0, 8, 2): rnd2(a, 40+e, 41+e, 56, 63, faithful)
        for d in range(4): unpack2(a, 16+4*j+d, 48+2*d, 49+2*d, 63)
        for e in range(8): a(f'v_add_f32 v{40+e}, v{40+e}, v{48+e}')
        for d in range(4): a(f'v_cvt_pk_bf16_f32 v{58+d+4*(j)}, v{40+2*d}, v{41+2*d}')
        so = '0' if j == 0 else 's59'
        a(f'buffer_store_dwordx4 v[{58+4*j}:{61+4*j}], v15, s[12:15], {so} offen')
    stp()
    if STAMP: a('s_waitcnt vmcnt(0)')
    stp(); stp.flush()
    a.L('K4_END')
    a('s_endpgm')
    txt, n = a.finalize()
    return txt, 256 if STAMP else 160
```

```python
WS_MOD = 0
WS_Y2  = 1 << 20
Y2_BLK = 16384 + 128
UR_CH = 4096 + 128
WS_X1  = WS_Y2 + (5 << 20)
WS_H2F = WS_X1 + (4 << 20)
WS_UR  = WS_H2F + (4 << 20)
WS_HF  = WS_UR + (5 << 20)
MOD_PLUS1 = True
WS_FLAG = 64 << 10
WS_WDT = 40 << 20
WS_GP = 128 << 10
WS_ACC = 32 << 10
MOD_F32 = True
WS_WGT = 48 << 20
```

```python
import sys
sys.path.insert(0, 'gen')
from common import *
from fe import *
from k3 import *
from k4 import *

def build(faithful=True, only=None):
    hdr = open('cdna_kernels/' + NAME + '.s.ref').read().split('; Override launch geometry')[0]
    ks = [('front_kernel', gen_fe, 256, 512, FE_LDS),
          ('ffn1_kernel', gen_k3, 256, 512, K3_LDS),
          ('ffn2_kernel', gen_k4, 256, 512, K4_LDS)]
    out = hdr
    for n, g, grid, blk, lds in ks:
        out += f'; @launch kernel={n} grid=({grid},1,1) block=({blk},1,1) lds={lds}\n'
    out += '.amdgcn_target "amdgcn-amd-amdhsa--gfx950"\n.text\n'
    descs = ''
    for n, g, grid, blk, lds in ks:
        t, v = g(n, faithful)
        out += t
        descs += kernel_desc(n, v)
    out += '.section .rodata,"a"\n.p2align 6\n' + descs
    return out

if __name__ == '__main__':
    faithful = False
    txt = build(faithful)
    path = 'cdna_kernels/' + NAME + '.s'
    if '-o' in sys.argv: path = sys.argv[sys.argv.index('-o')+1]
    open(path, 'w').write(txt)
    print('wrote', path, len(txt))
```

```python
from asmlib import *

NAME = 'adaLN_cond__ssm_conv_h3__glu_gated_geglu__prompt'
A_Q, A_K, A_V, A_SHK, A_SSMK, A_SSMD, B_X, B_WG, B_WU, B_WD, A_C, A_WMOD, A_OUT, A_DBG, A_WS = [8*i for i in range(15)]
S, D, F = 2048, 1024, 3584
from layout import *
SRD3 = '0x00020000'

def srd(a, d, base, size, off=0):
    if off:
        a(f's_add_u32 s{d}, s{base}, {off}')
        a(f's_addc_u32 s{d+1}, s{base+1}, 0')
    else:
        a(f's_mov_b32 s{d}, s{base}')
        a(f's_mov_b32 s{d+1}, s{base+1}')
    a(f's_mov_b32 s{d+2}, {size}')
    a(f's_mov_b32 s{d+3}, {SRD3}')

def kernel_begin(a, name):
    a.lines.append(f'.globl {name}')
    a.lines.append('.p2align 8')
    a.lines.append(f'.type {name},@function')
    a.L(name)

def kernel_desc(name, vgpr, sgpr=102):
    acc = (vgpr + 3) // 4 * 4
    return f'''.amdhsa_kernel {name}
  .amdhsa_next_free_vgpr {vgpr}
  .amdhsa_next_free_sgpr {sgpr}
  .amdhsa_accum_offset {acc}
  .amdhsa_group_segment_fixed_size 0
  .amdhsa_kernarg_size 120
  .amdhsa_user_sgpr_count 2
  .amdhsa_user_sgpr_kernarg_segment_ptr 1
  .amdhsa_system_sgpr_workgroup_id_x 1
  .amdhsa_float_denorm_mode_32 3
.end_amdhsa_kernel
'''

class LQ:
    def __init__(self, a):
        self.a = a; self.q = []
    def issue(self, text, tag):
        assert len(self.q) < 15, 'lgkmcnt overflow'
        self.a(text); self.q.append(tag)
    def need(self, *tags):
        idx = -1
        for i, t in enumerate(self.q):
            if t in tags: idx = i
        if idx >= 0:
            n = len(self.q) - 1 - idx
            self.a(f's_waitcnt lgkmcnt({n})')
            self.q = self.q[idx+1:]
    def drain(self):
        if self.q:
            self.a('s_waitcnt lgkmcnt(0)'); self.q = []

def rnd2(a, x, y, t, smask, faithful=True):
    if not faithful: return
    a(f'v_cvt_pk_bf16_f32 v{t}, v{x}, v{y}')
    a(f'v_lshlrev_b32 v{x}, 16, v{t}')
    a(f'v_and_b32 v{y}, s{smask}, v{t}')

def unpack2(a, src, lo, hi, smask):
    a(f'v_lshlrev_b32 v{lo}, 16, v{src}')
    a(f'v_and_b32 v{hi}, s{smask}, v{src}')

import os
STAMP = os.environ.get('STAMP', '0') == '1'
WS_STAMP = 200 << 20
class Stamps:
    def __init__(self, a, kidx, wave_sgpr, vs=255):
        self.a = a; self.k = kidx; self.n = 2; self.w = wave_sgpr; self.vs = vs
        if STAMP:
            a(f'v_mov_b32 v{vs}, 0x11111111')
            a('s_memrealtime s[94:95]')
            a('s_waitcnt lgkmcnt(0)')
            a(f'v_writelane_b32 v{vs}, s94, 0')
    def __call__(self, idx=None):
        if not STAMP: return
        a = self.a
        if idx is not None:
            a('s_memtime s[94:95]'); a('s_waitcnt lgkmcnt(0)'); a(f'v_writelane_b32 v{self.vs}, s94, {idx}'); return
        a('s_memtime s[94:95]')
        a('s_waitcnt lgkmcnt(0)')
        a(f'v_writelane_b32 v{self.vs}, s94, {self.n}'); self.n += 1
        assert self.n <= 16
    def flush(self, vtmp=None):
        if not STAMP: return
        a = self.a; vs = self.vs
        lab = a.label(f'STAMP_SKIP{self.k}')
        a('s_memrealtime s[94:95]')
        a(f's_load_dwordx2 s[96:97], s[0:1], {A_WS}')
        a('s_waitcnt lgkmcnt(0)')
        a(f'v_writelane_b32 v{vs}, s94, 1')
        a(f's_cmp_lg_u32 s{self.w}, {int(os.environ.get("STAMPW", "0"))}')
        a(f's_cbranch_scc1 {lab}')
        a(f's_add_u32 s96, s96, {WS_STAMP + self.k*65536}')
        a('s_addc_u32 s97, s97, 0')
        a('s_mov_b32 s98, 65536')
        a('s_mov_b32 s99, 0x00020000')
        a('s_mov_b64 exec, 0xffff')
        a(f'v_mbcnt_lo_u32_b32 v{vs-1}, -1, 0')
        a(f'v_lshlrev_b32 v{vs-1}, 2, v{vs-1}')
        a('s_lshl_b32 s94, s2, 6')
        a(f'buffer_store_dword v{vs}, v{vs-1}, s[96:99], s94 offen')
        a('s_waitcnt vmcnt(0)')
        a.L(lab)

NT = os.environ.get('NT', '')
def nt(c): return ' nt' if c in NT else ''

WT = os.environ.get('WT', ' sc1')

CODEPF = os.environ.get('CODEPF', '0') == '1'
def code_prefetch(a, start_label, end_label, sbase, vtmp, vdst, nchunks, tag):
    if not CODEPF: return 0
    here = f'{tag}_PC'
    a(f's_getpc_b64 s[{sbase}:{sbase+1}]')
    a.L(here)
    a(f's_add_u32 s{sbase}, s{sbase}, {start_label}-{here}')
    a(f's_addc_u32 s{sbase+1}, s{sbase+1}, ({start_label}-{here})>>31' .replace('>>31', '>>31'))
    a(f'v_and_b32 v{vtmp}, 63, v0')
    a(f'v_lshlrev_b32 v{vtmp}, 7, v{vtmp}')
    for i in range(nchunks):
        a(f'v_add_u32 v{vtmp+1}, {8192*i}, v{vtmp}')
        a(f'v_min_u32 v{vtmp+1}, {end_label}-{start_label}-4, v{vtmp+1}')
        a(f'global_load_dword v{vdst}, v{vtmp+1}, s[{sbase}:{sbase+1}]')
    return nchunks
```

```python
from common import *
from k2 import wave_reduce, pk, layernorm
PF_GU = os.environ.get('PFGU', '1') == '1'
PFPOS = os.environ.get('PFPOS', 'early')
PFROWS = int(os.environ.get('PFROWS', '320'))

UR = 0; URCH = 4608
FILT = 18432; FCH = 8320
YST = 51712
SCB = 70144; PARTB = 72192; CNT = 80384
FE_LDS = 80512
C_FIN, C_B, C_A1, C_A2, C_F, C_U, C_S, C_G, C_L = [CNT + 4*i for i in range(9)]
P2_T = 0; P2_HS = 18432; P2_M = 36864
SPIN_MAX = 1 << 16
F1_REP = 2048 + 128
POLL_SLEEP = int(os.environ.get('PSLEEP', '0'))

def poll_loop(a, label, load_fn, cmp_fn):
    a(f's_mov_b32 s90, {SPIN_MAX}')
    a.L(label)
    load_fn()
    a('s_waitcnt vmcnt(0)')
    cmp_fn()
    a('s_cmp_eq_u64 vcc, -1')
    a(f's_cbranch_scc1 {label}_OK')
    a(f's_sleep {POLL_SLEEP}')
    a('s_sub_u32 s90, s90, 1')
    a('s_cmp_lg_u32 s90, 0')
    a(f's_cbranch_scc1 {label}')
    a.L(f'{label}_OK')

def lds_add(a, cnt, va, vb):
    a('s_waitcnt lgkmcnt(0)')
    a(f'v_mov_b32 v{va}, {cnt}')
    a(f'v_mov_b32 v{vb}, 1')
    a('s_mov_b64 exec, 1')
    a(f'ds_add_u32 v{va}, v{vb}')
    a('s_mov_b64 exec, -1')

def lds_wait(a, cnt, n, va, vb, tag):
    a(f'v_mov_b32 v{va}, {cnt}')
    a(f's_mov_b32 s90, {SPIN_MAX*16}')
    a.L(tag)
    a(f'ds_read_b32 v{vb}, v{va}')
    a('s_waitcnt lgkmcnt(0)')
    a(f'v_cmp_eq_u32 vcc, {n}, v{vb}')
    a('s_cmp_eq_u64 vcc, -1')
    a(f's_cbranch_scc1 {tag}_OK')
    a('s_sub_u32 s90, s90, 1')
    a('s_cmp_lg_u32 s90, 0')
    a(f's_cbranch_scc1 {tag}')
    a.L(f'{tag}_OK')

def wait2(a, nA, nB):
    la = a.label('FE_W'); lb = a.label('FE_W')
    a('s_cmp_ge_u32 s62, 4')
    a(f's_cbranch_scc1 {la}')
    a(f's_waitcnt vmcnt({nA})')
    a(f's_branch {lb}')
    a.L(la)
    a(f's_waitcnt vmcnt({nB})')
    a.L(lb)

def filter_and_pads(a):
    a('v_lshlrev_b32 v48, 4, v61')
    a(f'v_add_u32 v48, {FILT+32}, v48')
    a('v_cmp_eq_u32 vcc, 0, v61')
    for j in range(4): a(f'v_cndmask_b32 v{112+j}, v{112+j}, 0, vcc')
    for j in range(4):
        q, p = 96+4*j, 112+j
        a(f'ds_write_b128 v48, v[{q}:{q+3}] offset:{j*FCH}')
        tb = 44 + 4*(j & 1) if False else (116 + 4*(j & 1))
        a(f'v_alignbit_b32 v{tb}, v{q}, v{p}, 16')
        a(f'v_alignbit_b32 v{tb+1}, v{q+1}, v{q}, 16')
        a(f'v_alignbit_b32 v{tb+2}, v{q+2}, v{q+1}, 16')
        a(f'v_alignbit_b32 v{tb+3}, v{q+3}, v{q+2}, 16')
        a(f'ds_write_b128 v48, v[{tb}:{tb+3}] offset:{j*FCH+4160}')
    a('v_mov_b32 v136, 0'); a('v_mov_b32 v137, 0'); a('v_mov_b32 v138, 0'); a('v_mov_b32 v139, 0')
    a('v_bfe_u32 v140, v0, 5, 2')
    a(f'v_mul_u32_u24 v140, {URCH}, v140')
    a('v_and_b32 v141, 31, v0')
    a('v_lshl_add_u32 v140, v141, 4, v140')
    a(f'v_add_u32 v140, {UR+4096}, v140')
    a('v_and_b32 v141, 7, v0')
    a('v_bfe_u32 v142, v0, 3, 2')
    a(f'v_mul_u32_u24 v142, {FCH}, v142')
    a('v_subrev_u32 v143, 2, v141')
    a('v_min_u32 v143, 3, v143')
    a('v_lshlrev_b32 v143, 4, v143')
    a('v_add_u32 v143, 4128, v143')
    a('v_lshlrev_b32 v144, 4, v141')
    a('v_cmp_gt_u32 vcc, 2, v141')
    a('v_cndmask_b32 v143, v143, v144, vcc')
    a('v_add_u32 v142, v142, v143')
    a(f'v_add_u32 v142, {FILT}, v142')
    a('v_and_b32 v141, 128, v0')
    a('v_cmp_eq_u32 vcc, 0, v141')
    a('v_cndmask_b32 v140, v142, v140, vcc')
    a('ds_write_b128 v140, v[136:139]')

def gen_fe(name, faithful=False, a=None, fused=False):
    if a is None: a = Asm()
    kernel_begin(a, name)
    a('s_cmp_ge_u32 s2, 256')
    a('s_cbranch_scc1 FE_END')
    st = Stamps(a, 0, 62); st()
    a(f's_load_dwordx4 s[4:7], s[0:1], {A_K}')
    a(f's_load_dwordx4 s[52:55], s[0:1], {A_SHK}')
    a(f's_load_dwordx2 s[56:57], s[0:1], {A_SSMD}')
    a(f's_load_dwordx4 s[44:47], s[0:1], {A_C}')
    a(f's_load_dwordx4 s[48:51], s[0:1], {A_DBG}')
    a(f's_load_dwordx2 s[58:59], s[0:1], {A_Q}')
    a('s_memrealtime s[64:65]')
    a('v_lshrrev_b32 v1, 6, v0')
    a('s_mov_b32 s63, 0xffff0000')
    a('v_readfirstlane_b32 s62, v1')
    a('s_lshr_b32 s40, s2, 4')
    a('s_and_b32 s41, s2, 15')
    a('v_lshrrev_b32 v1, 3, v0')
    a('v_and_b32 v2, 7, v0')
    a('s_lshl_b32 s42, s40, 7')
    a('v_lshl_add_u32 v3, v1, 1, s42')
    a('v_lshlrev_b32 v4, 11, v3')
    a('v_lshl_add_u32 v4, v2, 4, v4')
    a('s_lshl_b32 s43, s41, 7')
    a('v_add_u32 v4, s43, v4')
    a('v_bfrev_b32 v8, 1')
    for j in range(3):
        a(f'v_subrev_u32 v{5+j}, {6144-2048*j}, v4')
        a(f'v_cmp_gt_u32 vcc, {3-j}, v3')
        a(f'v_cndmask_b32 v{5+j}, v{5+j}, v8, vcc')
    a('v_lshlrev_b32 v9, 6, v2')
    a('s_lshl_b32 s60, s41, 9')
    a('s_and_b32 s3, s2, 7')
    a('s_lshl_b32 s3, s3, 5')
    a('s_lshr_b32 s61, s2, 3')
    a('s_add_u32 s3, s3, s61')
    a('v_lshlrev_b32 v92, 2, v0')
    a('v_and_b32 v61, 255, v0')
    a('s_lshl_b32 s66, s3, 14')
    a('v_lshlrev_b32 v62, 4, v61')
    a('v_add_u32 v62, s66, v62')
    a('v_subrev_u32 v63, 4, v62')
    a('v_cmp_eq_u32 vcc, 0, v61')
    a('v_cndmask_b32 v63, v63, v62, vcc')
    a('s_waitcnt lgkmcnt(0)')
    srd(a, 8, 4, S*D*2)
    srd(a, 12, 6, S*D*2)
    srd(a, 20, 52, 8192)
    srd(a, 72, 44, 2048)
    K_, V_, T_ = 16, 36, 44
    a('buffer_load_dword v128, v92, s[72:75], 0 offen')
    for j in range(3):
        a(f'buffer_load_dwordx4 v[{K_+4*j}:{K_+4*j+3}], v{5+j}, s[8:11], 0 offen')
    a(f'buffer_load_dwordx4 v[{K_+12}:{K_+15}], v4, s[8:11], 0 offen')
    a(f'buffer_load_dwordx4 v[{K_+16}:{K_+19}], v4, s[8:11], 0 offen offset:2048')
    a(f'buffer_load_dwordx4 v[{V_}:{V_+3}], v4, s[12:15], 0 offen')
    a(f'buffer_load_dwordx4 v[{V_+4}:{V_+7}], v4, s[12:15], 0 offen offset:2048')
    for j in range(4):
        a(f'buffer_load_dwordx4 v[{T_+4*j}:{T_+4*j+3}], v9, s[20:23], s60 offen offset:{16*j}')
    srd(a, 16, 54, D*S*2)
    if CODEPF:
        a('s_cmp_lg_u32 s62, 2')
        a('s_cbranch_scc1 FE_NOCPF')
        code_prefetch(a, name, 'TEXT_END', 96, 120, 122, 4, 'FE')
        a.L('FE_NOCPF')
    srd(a, 24, 48, 256)
    srd(a, 28, 50, 1 << 20)
    a('s_or_b32 s64, s64, 1')
    a('s_cmp_lg_u32 s2, 0')
    a('s_cbranch_scc1 FE_NONONCE')
    a('v_mov_b32 v10, s64')
    a('v_mov_b32 v11, s65')
    a('v_mov_b32 v12, 0')
    a('s_cmp_lg_u32 s62, 0')
    a('s_cbranch_scc1 FE_NOTW0')
    a('s_mov_b64 exec, 1')
    a('buffer_store_dwordx2 v[10:11], v12, s[24:27], 0 offen sc1')
    a('s_mov_b64 exec, -1')
    a.L('FE_NOTW0')
    a.L('FE_NONONCE')
    a('s_lshl_b32 s68, s3, 3')
    a('s_load_dwordx2 s[70:71], s[56:57], s68')
    srd(a, 32, 58, S*D*2)
    a('v_and_b32 v90, 63, v0')
    a('v_lshlrev_b32 v91, 4, v90')
    a('v_mov_b32 v146, v91')
    a('s_lshl_b32 s69, s2, 3')
    a('s_add_u32 s69, s69, s62')
    a('s_lshl_b32 s69, s69, 11')
    a('s_mov_b32 s78, 0x05040100')
    a('s_mov_b32 s79, 0x07060302')
    a('v_sub_u32 v10, 63, v1')
    a('v_lshlrev_b32 v11, 3, v2')
    a('v_xor_b32 v10, v10, v11')
    a('v_lshlrev_b32 v10, 2, v10')
    a('v_lshl_add_u32 v10, v2, 11, v10')
    a(f'v_add_u32 v10, {YST}, v10')
    a(f'v_mov_b32 v133, {CNT}')
    for r in range(136, 140): a(f'v_mov_b32 v{r}, 0')
    a('ds_write_b128 v133, v[136:139]')
    a('ds_write_b128 v133, v[136:139] offset:16')
    a('ds_write_b128 v133, v[136:139] offset:32')
    a('s_waitcnt vmcnt(11)')
    unpack2(a, 128, 130, 131, 63)
    for x in (130, 131):
        a(f'v_mul_f32 v132, 0xbfb8aa3b, v{x}')
        a('v_exp_f32 v132, v132')
        a('v_add_f32 v132, 1.0, v132')
        a('v_rcp_f32 v132, v132')
        a(f'v_mul_f32 v{x}, v{x}, v132')
    a('v_cvt_pk_bf16_f32 v130, v130, v131')
    a(f'v_add_u32 v133, {SCB}, v92')
    a('ds_write_b32 v133, v130')
    a('s_waitcnt vmcnt(0)')
    st()
    kr = lambda r, d: K_ + 4*(r+3) + d
    for i in range(8):
        d, hf = i >> 1, i & 1
        sel = 's79' if hf else 's78'
        w01, w23 = T_ + 2*i, T_ + 2*i + 1
        b = 64 + 8*(i & 1)
        a(f'v_perm_b32 v{b}, v{kr(-1,d)}, v{kr(0,d)}, {sel}')
        a(f'v_perm_b32 v{b+1}, v{kr(-3,d)}, v{kr(-2,d)}, {sel}')
        a(f'v_perm_b32 v{b+2}, v{kr(0,d)}, v{kr(1,d)}, {sel}')
        a(f'v_perm_b32 v{b+3}, v{kr(-2,d)}, v{kr(-1,d)}, {sel}')
        a(f'v_dot2_f32_bf16 v{b+4}, v{b}, v{w01}, 0')
        a(f'v_dot2_f32_bf16 v{b+5}, v{b+2}, v{w01}, 0')
        a(f'v_dot2c_f32_bf16 v{b+4}, v{b+1}, v{w23}')
        a(f'v_dot2c_f32_bf16 v{b+5}, v{b+3}, v{w23}')
        if hf:
            a(f'v_and_b32 v{b+6}, s63, v{V_+d}'); a(f'v_and_b32 v{b+7}, s63, v{V_+4+d}')
        else:
            a(f'v_lshlrev_b32 v{b+6}, 16, v{V_+d}'); a(f'v_lshlrev_b32 v{b+7}, 16, v{V_+4+d}')
        a(f'v_mul_f32 v{b+4}, v{b+4}, v{b+6}')
        a(f'v_mul_f32 v{b+5}, v{b+5}, v{b+7}')
        a(f'v_cvt_pk_bf16_f32 v{b}, v{b+5}, v{b+4}')
        a(f'ds_write_b32 v10, v{b} offset:{256*i}')
    a('v_bfe_u32 v1, v0, 4, 4')
    a('v_and_b32 v2, 15, v0')
    a('v_lshlrev_b32 v3, 4, v2')
    a('v_lshrrev_b32 v4, 3, v1')
    a('v_lshlrev_b32 v4, 5, v4')
    a('v_xor_b32 v4, v4, v3')
    a('v_lshl_add_u32 v4, v1, 8, v4')
    a(f'v_mul_u32_u24 v6, {UR_CH}, v1')
    a('v_add_u32 v6, v6, v3')
    a(f's_mul_i32 s80, s41, {64*UR_CH}')
    a('s_lshl_b32 s81, s40, 8')
    a('s_sub_u32 s80, s80, s81')
    a('s_add_u32 s80, s80, 3840')
    srd(a, 8, 50, D*UR_CH, WS_UR)
    srd(a, 12, 50, 256*Y2_BLK, WS_Y2)
    a('s_waitcnt lgkmcnt(0)')
    a('s_barrier')
    a('s_cmp_ge_u32 s62, 4')
    a('s_cbranch_scc1 FE_GB')
    for j in range(4):
        a(f'v_xor_b32 v5, {64*j}, v4')
        a(f'ds_read_b128 v[{16+4*j}:{19+4*j}], v5 offset:{YST+4096*j}')
    for j in range(4):
        a(f's_waitcnt lgkmcnt({3-j})')
        a(f'buffer_store_dwordx4 v[{16+4*j}:{19+4*j}], v6, s[8:11], s80 offen sc1')
        if j < 3: a(f's_add_u32 s80, s80, {16*UR_CH}')
    a('s_cmp_lg_u32 s62, 0')
    a('s_cbranch_scc1 FE_NONP')
    a('v_mov_b32 v12, 0')
    def ld_nonce(): a('buffer_load_dwordx2 v[156:157], v12, s[24:27], 0 offen sc1')
    def cmp_nonce(): a('v_cmp_ne_u32 vcc, 0, v156')
    poll_loop(a, 'FE_PN', ld_nonce, cmp_nonce)
    a.L('FE_NONP')
    a('s_waitcnt vmcnt(0)')
    lds_add(a, C_U, 12, 13)
    a('s_cmp_lg_u32 s62, 0')
    a('s_cbranch_scc1 FE_S0_SKIP')
    lds_wait(a, C_U, 4, 12, 13, 'FE_WU')
    st()
    a('v_mov_b32 v12, 0')
    a('s_lshl_b32 s82, s41, 7')
    a('s_lshl_b32 s83, s40, 3')
    a('s_add_u32 s82, s82, s83')
    a(f's_add_u32 s82, s82, {WS_FLAG}')
    a('s_mov_b64 exec, 1')
    a('buffer_store_dwordx2 v[156:157], v12, s[28:31], s82 offen sc1')
    a('s_mov_b64 exec, -1')
    a('s_lshr_b32 s84, s3, 4')
    a('v_and_b32 v12, 15, v0')
    a('v_lshlrev_b32 v12, 3, v12')
    a('s_lshl_b32 s85, s84, 7')
    a(f's_add_u32 s85, s85, {WS_FLAG}')
    def ld0(): a('buffer_load_dwordx2 v[10:11], v12, s[28:31], s85 offen sc1')
    def cmp0(): a('v_cmp_eq_u64 vcc, v[10:11], v[156:157]')
    poll_loop(a, 'FE_P0', ld0, cmp0)
    lds_add(a, C_S, 12, 13)
    a.L('FE_S0_SKIP')
    lds_wait(a, C_S, 1, 12, 13, 'FE_WS')
    st()
    a('v_lshlrev_b32 v13, 4, v0')
    a(f's_mul_i32 s66, s3, {4*UR_CH}')
    for j in range(4):
        a(f'buffer_load_dwordx4 v[{16+4*j}:{19+4*j}], v13, s[8:11], s66 offen sc1')
        a(f's_add_u32 s66, s66, {UR_CH}')
    lds_add(a, C_L, 12, 14)
    a('v_and_b32 v1, 15, v0')
    a('v_bfe_u32 v2, v0, 4, 2')
    SETS = [(24, 56), (160, 192)]
    ACC = 88
    VB, VA = 120, 121
    a(f's_mul_i32 s88, s62, {URCH}')
    a(f's_add_u32 s88, s88, {UR+4112-3584}')
    a('v_lshlrev_b32 v3, 5, v1')
    a('v_lshl_add_u32 v3, v2, 4, v3')
    a(f'v_sub_u32 v{VB}, s88, v3')
    a(f's_mul_i32 s88, s62, {FCH}')
    a(f's_add_u32 s88, s88, {FILT+32+18}')
    a('v_lshlrev_b32 v3, 1, v1')
    a('v_lshlrev_b32 v4, 4, v2')
    a('v_sub_u32 v3, v3, v4')
    a('v_add_u32 v3, s88, v3')
    a('v_add_u32 v4, 4162, v3')
    a('v_and_b32 v5, 1, v1')
    a('v_cmp_eq_u32 vcc, 1, v5')
    a(f'v_cndmask_b32 v{VA}, v4, v3, vcc')
    for j in range(1, 4): a(f'v_add_u32 v{VA+j}, {1024*j}, v{VA}')
    for r in range(32): a(f'v_mov_b32 v{ACC+r}, 0')
    a('s_lshr_b32 s88, s62, 1')
    a('s_cmp_eq_u32 s88, 0')
    a('s_cselect_b32 s88, s70, s71')
    a('s_bitcmp1_b32 s62, 0')
    a('s_cselect_b32 s89, 0, 16')
    a('s_lshl_b32 s88, s88, s89')
    a('s_and_b32 s91, s88, s63')
    for j in range(4):
        a(f's_waitcnt vmcnt({3-j})')
        a(f'ds_write_b128 v13, v[{16+4*j}:{19+4*j}] offset:{UR+URCH*j}')
    lds_add(a, C_A1, 12, 14)
    lds_wait(a, C_F, 4, 12, 14, 'FE_WF')
    lds_wait(a, C_A1, 4, 12, 14, 'FE_WA1')
    st()
    class Q:
        def __init__(self): self.q = []
        def issue(self, text, tag):
            a(text); self.q.append(tag)
            if len(self.q) >= 13:
                a('s_waitcnt lgkmcnt(8)'); self.q = self.q[-8:]
        def drain(self):
            if self.q: a('s_waitcnt lgkmcnt(0)'); self.q = []
    lq = Q()
    def loads_for(st_, adv):
        AB, BB = SETS[st_]
        L = []
        def la(dp):
            base = VA + (dp >> 1); o = 128*(dp & 1) + 16*adv
            L.append((f'ds_read2_b32 v[{AB+4*dp}:{AB+4*dp+1}], v{base} offset0:{o} offset1:{o+1}', f'{st_}A{dp}a'))
            L.append((f'ds_read2_b32 v[{AB+4*dp+2}:{AB+4*dp+3}], v{base} offset0:{o+2} offset1:{o+3}', f'{st_}A{dp}b'))
        la(0)
        for e in range(8): L.append((f'ds_read_b128 v[{BB+4*e}:{BB+4*e+3}], v{VB} offset:{512*(7-e)+64*adv}', f'{st_}B{e}'))
        for dp in range(1, 8): la(dp)
        return L
    for t_, g_ in loads_for(0, 0): lq.issue(t_, g_)
    lq.drain()
    a('s_mov_b32 s92, 4')
    a.L('FE_RHO')
    for ph in range(2):
        AB, BB = SETS[ph]
        nxt = loads_for(1 - ph, ph + 1)
        k = 0
        for dp in range(8):
            for e in range(8 - dp):
                t = dp + e
                a(f'v_mfma_f32_16x16x32_bf16 v[{ACC+4*t}:{ACC+4*t+3}], v[{AB+4*dp}:{AB+4*dp+3}], v[{BB+4*e}:{BB+4*e+3}], v[{ACC+4*t}:{ACC+4*t+3}]')
                if k < len(nxt):
                    lq.issue(*nxt[k]); k += 1
        lq.drain()
    for j in range(4): a(f'v_add_u32 v{VA+j}, 128, v{VA+j}')
    a(f'v_add_u32 v{VB}, 128, v{VB}')
    a('s_sub_u32 s92, s92, 1')
    a('s_cmp_lg_u32 s92, 0')
    a('s_cbranch_scc1 FE_RHO')
    st()
    a(f's_mul_i32 s88, s62, {URCH}')
    a(f's_add_u32 s88, s88, {UR+4088-3584}')
    a('v_lshlrev_b32 v3, 5, v1')
    a('v_lshl_add_u32 v3, v2, 3, v3')
    a('v_sub_u32 v3, s88, v3')
    for t in range(8): a(f'ds_read_b64 v[{24+2*t}:{25+2*t}], v3 offset:{512*(7-t)}')
    a('s_lshl_b32 s89, s62, 4')
    a(f's_add_u32 s88, s89, {YST}')
    a('v_mul_u32_u24 v4, 144, v1')
    a('v_lshrrev_b32 v6, 1, v2')
    a('v_lshl_add_u32 v4, v6, 6, v4')
    a('v_and_b32 v6, 1, v2')
    a('v_lshl_add_u32 v4, v6, 3, v4')
    a('v_add_u32 v4, s88, v4')
    a('s_waitcnt lgkmcnt(0)')
    for t in range(8):
        y = [ACC+4*t+r for r in range(4)]
        tb = 48 + 8*(t & 1)
        unpack2(a, 24+2*t, tb+3, tb+2, 63)
        unpack2(a, 25+2*t, tb+1, tb, 63)
        for r in range(4): a(f'v_fma_f32 v{y[r]}, s91, v{tb+r}, v{y[r]}')
        a(f'v_cvt_pk_bf16_f32 v{tb+4}, v{y[0]}, v{y[1]}')
        a(f'v_cvt_pk_bf16_f32 v{tb+5}, v{y[2]}, v{y[3]}')
        a(f'ds_write_b64 v4, v[{tb+4}:{tb+5}] offset:{2304*t}')
    a('v_bfe_u32 v3, v0, 2, 6')
    a('v_and_b32 v4, 3, v0')
    a('v_lshrrev_b32 v5, 1, v3')
    a('v_mul_u32_u24 v5, 144, v5')
    a('v_and_b32 v6, 1, v3')
    a('v_lshl_add_u32 v5, v6, 6, v5')
    a('v_lshl_add_u32 v5, v4, 4, v5')
    a(f'v_add_u32 v5, {YST}, v5')
    a(f'v_mul_u32_u24 v6, {Y2_BLK}, v3')
    a('v_lshl_add_u32 v6, v4, 4, v6')
    a('s_lshl_b32 s88, s3, 6')
    lds_add(a, C_A2, 12, 13)
    lds_wait(a, C_A2, 4, 12, 13, 'FE_WA2')
    for j in range(4): a(f'ds_read_b128 v[{8+4*j}:{11+4*j}], v5 offset:{4608*j}')
    for j in range(4):
        a(f's_waitcnt lgkmcnt({3-j})')
        a(f'buffer_store_dwordx4 v[{8+4*j}:{11+4*j}], v6, s[12:15], s88 offen' + (' sc1' if fused else WT))
        if j < 3: a(f's_add_u32 s88, s88, {64*Y2_BLK}')
    a('s_branch FE_YJ')
    a.L('FE_GB')
    if os.environ.get('FDELAY', '1') == '1': lds_wait(a, C_U, 4, 133, 134, 'FE_WU2')
    a('s_mov_b32 s67, 0')
    for j in range(4):
        a(f'buffer_load_dwordx4 v[{96+4*j}:{99+4*j}], v62, s[16:19], s67 offen')
        a(f'buffer_load_dword v{112+j}, v63, s[16:19], s67 offen')
        if j < 3: a('s_add_u32 s67, s67, 4096')
    a('s_waitcnt vmcnt(0)')
    filter_and_pads(a)
    lds_add(a, C_F, 133, 134)
    srd(a, 36, 46, 1024*6144*2)
    a('s_cmp_lt_u32 s2, 192')
    a(f's_cselect_b32 s38, {1024*6144*2}, 0')
    a('s_mul_i32 s76, s2, 1366')
    a('s_lshr_b32 s76, s76, 16')
    a('s_mul_i32 s77, s76, 48')
    a('s_sub_u32 s42, s2, s77')
    a('s_sub_u32 s65, s62, 4')
    a('s_lshl_b32 s76, s76, 8')
    a('s_lshl_b32 s77, s65, 6')
    a('s_add_u32 s76, s76, s77')
    a('s_lshl_b32 s64, s76, 1')
    a('s_mul_i32 s77, s76, 12288')
    a('s_lshl_b32 s76, s42, 8')
    a('s_add_u32 s77, s77, s76')
    a(f's_add_u32 s64, s64, {SCB}')
    a('v_lshrrev_b32 v135, 4, v90')
    a('v_lshlrev_b32 v133, 2, v135')
    a('v_add_u32 v133, s64, v133')
    for p in range(8): a(f'ds_read_b32 v{136+p}, v133 offset:{16*p}')
    a('s_mov_b32 s76, 24576')
    a('v_mul_lo_u32 v93, s76, v135')
    a('v_and_b32 v95, 15, v90')
    a('v_lshl_add_u32 v93, v95, 4, v93')
    for r in range(8): a(f'v_mov_b32 v{160+r}, 0')
    def wl(i):
        a(f'buffer_load_dwordx4 v[{176+4*i}:{179+4*i}], v93, s[36:39], s77 offen')
        a(f's_add_u32 s77, s77, {12288 if i % 2 == 0 else 7*12288}')
    def wm(p):
        for d in range(4):
            a(f'v_perm_b32 v134, v{176+4*(2*p+1)+d}, v{176+4*(2*p)+d}, s78')
            a(f'v_perm_b32 v135, v{176+4*(2*p+1)+d}, v{176+4*(2*p)+d}, s79')
            a(f'v_dot2c_f32_bf16 v{160+2*d}, v134, v{136+p}')
            a(f'v_dot2c_f32_bf16 v{160+2*d+1}, v135, v{136+p}')
    a('s_cmp_lg_u32 s62, 7')
    a('s_cbranch_scc1 FE_NON7')
    a('v_mov_b32 v133, 0')
    def ld_nonce7(): a('buffer_load_dword v156, v133, s[24:27], 0 offen offset:8 sc1')
    def cmp_nonce7(): a('v_cmp_ne_u32 vcc, 0, v156')
    poll_loop(a, 'FE_PN7', ld_nonce7, cmp_nonce7)
    lds_add(a, C_G, 133, 134)
    a.L('FE_NON7')
    if os.environ.get('WEARLY', '0') != '1': lds_wait(a, C_L, 4, 133, 134, 'FE_WL')
    a('s_add_u32 s76, s2, 0')
    a('s_cmp_lg_u32 s2, 255')
    a('s_cbranch_scc1 FE_NOZERO')
    a('s_cmp_lg_u32 s62, 5')
    a('s_cbranch_scc1 FE_NOZERO')
    a('v_mov_b32 v12, 0')
    for r in range(120, 124): a(f'v_mov_b32 v{r}, 0')
    a('v_and_b32 v124, 63, v0')
    a('v_lshlrev_b32 v124, 4, v124')
    a(f's_mov_b32 s68, {WS_ACC}')
    for i in range(24):
        a('buffer_store_dwordx4 v[120:123], v124, s[28:31], s68 offen sc1')
        a('s_add_u32 s68, s68, 1024')
    a('s_waitcnt vmcnt(0)')
    a('v_mov_b32 v10, 1')
    a('s_mov_b64 exec, 1')
    a('buffer_store_dword v10, v12, s[24:27], 0 offen offset:8 sc1')
    a('s_mov_b64 exec, -1')
    a.L('FE_NOZERO')
    for i in range(16): wl(i)
    a('s_waitcnt lgkmcnt(0)')
    for p in range(8):
        a(f's_waitcnt vmcnt({14-2*p})')
        wm(p)
    st(7)
    a('v_lshrrev_b32 v133, 4, v90')
    a('v_lshlrev_b32 v133, 9, v133')
    a('v_lshl_add_u32 v133, v95, 5, v133')
    a('s_lshl_b32 s64, s65, 11')
    a(f's_add_u32 s64, s64, {PARTB}')
    a('v_add_u32 v133, s64, v133')
    a('ds_write_b128 v133, v[160:163]')
    a('ds_write_b128 v133, v[164:167] offset:16')
    lds_add(a, C_B, 133, 134)
    lds_wait(a, C_B, 4, 133, 134, 'FE_WB')
    a('v_and_b32 v133, 31, v90')
    a('v_lshlrev_b32 v133, 2, v133')
    a('v_lshrrev_b32 v134, 5, v90')
    a('v_lshl_add_u32 v134, v134, 12, v133')
    a('s_lshl_b32 s64, s65, 7')
    a(f's_add_u32 s76, s64, {PARTB}')
    a('v_add_u32 v134, s76, v134')
    for j in range(8): a(f'ds_read_b32 v{160+j}, v134 offset:{512*j}')
    a('s_waitcnt lgkmcnt(0)')
    pk(a, 'v_pk_add_f32', 160, 160, 162)
    pk(a, 'v_pk_add_f32', 164, 164, 166)
    pk(a, 'v_pk_add_f32', 160, 160, 164)
    a('v_add_f32 v160, v160, v161')
    a('v_mov_b32 v161, v160')
    a('v_permlane32_swap_b32 v160, v161')
    a('v_add_f32 v160, v160, v161')
    a('s_lshl_b32 s77, s42, 9')
    a('s_add_u32 s76, s77, s64')
    a(f's_add_u32 s76, s76, {WS_ACC}')
    a('s_cmp_ge_u32 s2, 192')
    a('s_cbranch_scc1 FE_YB')
    lds_wait(a, C_G, 1, 134, 135, 'FE_WG')
    a('s_mov_b32 s64, -1')
    a('s_mov_b32 s65, 0')
    a('s_mov_b64 exec, s[64:65]')
    a('buffer_atomic_add_f32 v160, v133, s[28:31], s76 offen')
    a('s_mov_b64 exec, -1')
    st(13)
    a.L('FE_YB')

    def emit_pf():
        if PF_GU:
            a('s_cmp_lt_u32 s62, 4')
            a('s_cbranch_scc1 FE_NOPF')
            a(f's_load_dwordx4 s[44:47], s[0:1], {B_WG}')
            a('s_waitcnt lgkmcnt(0)')
            per_wg = PFROWS*7168//128
            per_w = per_wg//4
            nld = (per_w + 1023)//1024
            srd(a, 36, 44, PFROWS*7168)
            a('s_cmp_lt_u32 s2, 128')
            a('s_cselect_b32 s36, s44, s46')
            a('s_cselect_b32 s37, s45, s47')
            a('s_and_b32 s64, s2, 127')
            a(f's_mul_i32 s64, s64, {per_wg}')
            a('s_sub_u32 s65, s62, 4')
            a(f's_mul_i32 s65, s65, {per_w}')
            a('s_add_u32 s64, s64, s65')
            for i in range(nld):
                a(f'buffer_load_dwordx4 v[{176+4*i}:{179+4*i}], v146, s[36:39], s64 offen offset:{1024*(i%4)}')
                if i % 4 == 3: a('s_add_u32 s64, s64, 4096')
            if os.environ.get('WTILE', '0') == '1':
                for seg in range(7):
                    a('v_and_b32 v232, 63, v0')
                    a(f'v_add_u32 v232, {seg*64}, v232')
                    a('v_mul_u32_u24 v233, 4682, v232')
                    a('v_lshrrev_b32 v233, 16, v233')
                    a('v_mul_u32_u24 v234, 14, v233')
                    a('v_sub_u32 v234, v232, v234')
                    a('v_lshlrev_b32 v233, 19, v233')
                    a(f'v_lshl_add_u32 v{240+seg}, v234, 4, v233')
                srd(a, 72, 50, 32*32*16384, WS_WGT)
                for rl in range(2):
                    a('s_and_b32 s64, s2, 127')
                    a('s_lshl_b32 s64, s64, 3')
                    a('s_sub_u32 s65, s62, 4')
                    a('s_lshl_b32 s65, s65, 1')
                    a('s_add_u32 s64, s64, s65')
                    if rl: a('s_add_u32 s64, s64, 1')
                    a('s_lshr_b32 s65, s64, 5')
                    a('s_lshl_b32 s65, s65, 14')
                    a('s_bfe_u32 s76, s64, 0x30002')
                    a('s_mul_i32 s76, s76, 960')
                    a('s_add_u32 s65, s65, s76')
                    a('s_and_b32 s76, s64, 3')
                    a('s_mul_i32 s76, s76, 224')
                    a('s_add_u32 s65, s65, s76')
                    a('s_lshr_b32 s76, s2, 7')
                    a('s_mul_i32 s76, s76, 7680')
                    a('s_add_u32 s65, s65, s76')
                    for seg in range(7):
                        j = rl*7 + seg
                        a(f's_waitcnt vmcnt({13 if j < 1 else 13})') if False else None
                        a(f's_waitcnt vmcnt(13)')
                        a(f'buffer_store_dwordx4 v[{176+4*j}:{179+4*j}], v{240+seg}, s[72:75], s65 offen sc1')
            a.L('FE_NOPF')
    a.L('FE_YJ')
    st(8)
    if fused: return st
    if os.environ.get('PFX', '1') == '1':
        a('buffer_load_dwordx4 v[148:151], v146, s[32:35], s69 offen')
        a('buffer_load_dwordx4 v[152:155], v146, s[32:35], s69 offen offset:1024')
    emit_pf()
    if STAMP: a('s_waitcnt vmcnt(0)')
    st(9); st.flush()
    a.L('FE_END')
    a('s_endpgm')
    txt, n = a.finalize()
    return txt, 256
```

```python
from common import *
from k2 import pk, layernorm
from fe import poll_loop, lds_add, lds_wait, gen_fe, C_FIN, F1_REP

WTILE = os.environ.get('WTILE', '0') == '1'
K3_WB = 960; K3_MAT = 7680
K3_KS = 16384 if WTILE else 15360
K3_STAGE = 2*K3_KS
P2B = 3*K3_STAGE
P2_T, P2_HS, P2_M = 0, 16384, 32768
K3_LDS = max(4*K3_STAGE, P2B + 43008)
WS_FLAG2 = WS_FLAG + 32768
WS_FLAG3 = WS_FLAG + 36864
WS_FLAGR = WS_FLAG + 40960
FUSE2 = os.environ.get('FUSE2', '0') == '1'
PD = int(os.environ.get('PD', '5'))
X3 = os.environ.get('X3', '')
REPACK = os.environ.get('REPACK', 'join')
RP_IT = int(os.environ.get('RP_IT', '3'))
W0BY1 = os.environ.get('W0BY1', '1') == '1' and not WTILE
TAILOV = os.environ.get('TAILOV', '0') == '1'
STAG = os.environ.get('STAG', '0') == '1'
POS_A = [int(x) for x in os.environ.get('POS_A', '1,2,4,5').split(',')]
POS_B = [int(x) for x in os.environ.get('POS_B', '7,8,10,11').split(',')]

class IdxStamps:
    def __init__(self, st, idxs): self.st = st; self.idxs = list(idxs)
    def __call__(self):
        i = self.idxs.pop(0) if self.idxs else None
        if i is not None: self.st(i)
    def flush(self): self.st.flush()

def gen_k3(name, faithful=False, fused=False):
    a = Asm()
    all1 = fused and FUSE2
    if fused:
        st0 = gen_fe(name, a=a, fused=True)
        stp = IdxStamps(st0, [9, None, None, 10, 11, None, 12, 13, None, None, 14, None, 15] if all1 else [9, None, None, 10, 11, 12, 13, 14, None, 15])
    else:
        kernel_begin(a, name)
        a('s_cmp_ge_u32 s2, 256')
        a('s_cbranch_scc1 K3_END')
        stp = Stamps(a, 1, 62); stp()
    a(f's_load_dwordx4 s[4:7], s[0:1], {B_WG}')
    a(f's_load_dwordx4 s[48:51], s[0:1], {A_DBG}')
    a(f's_load_dwordx2 s[30:31], s[0:1], {B_WD}')
    a(f's_load_dwordx2 s[42:43], s[0:1], {A_Q}')
    a('s_memrealtime s[46:47]')
    a('v_lshrrev_b32 v1, 6, v0')
    a('s_mov_b32 s63, 0xffff0000')
    a('v_readfirstlane_b32 s62, v1')
    a('v_and_b32 v2, 63, v0')
    a('s_and_b32 s58, s2, 7')
    a('s_lshr_b32 s59, s2, 3')
    a('s_and_b32 s52, s58, 1')
    a('s_lshl_b32 s52, s52, 2')
    a('s_and_b32 s53, s59, 3')
    a('s_add_u32 s52, s52, s53')
    a('s_lshr_b32 s53, s58, 1')
    a('s_lshl_b32 s53, s53, 3')
    a('s_lshr_b32 s54, s59, 2')
    a('s_add_u32 s53, s53, s54')
    a('s_lshl_b32 s55, s52, 5')
    a('s_add_u32 s55, s55, s53')
    a('s_lshl_b32 s92, s55, 3')
    a('s_add_u32 s92, s92, s62')
    a('s_lshl_b32 s92, s92, 11')
    VW, VX, VA0, VA1, VW2 = 3, 4, 5, 6, 9
    def waddr():
        if WTILE:
            a('s_lshl_b32 s56, s53, 19')
            a('s_lshl_b32 s57, s62, 11')
            a('s_add_u32 s56, s56, s57')
            a('v_lshlrev_b32 v7, 4, v2')
            a(f'v_add_u32 v{VW}, s56, v7')
            a(f'v_add_u32 v{VW2}, 1024, v{VW}')
            a('v_bfrev_b32 v8, 1')
            a('s_cmp_eq_u32 s62, 7')
            a('s_cselect_b32 s57, -1, 0')
            a('v_mov_b32 v7, s57')
            a('v_cmp_ne_u32 vcc, 0, v7')
            a(f'v_cndmask_b32 v{VW2}, v{VW2}, v8, vcc')
            a('s_lshl_b32 s58, s62, 11')
        else:
            a('v_mul_u32_u24 v7, 4682, v2')
            a('v_lshrrev_b32 v7, 16, v7')
            a('v_mul_u32_u24 v8, 14, v7')
            a('v_sub_u32 v8, v2, v8')
            a('s_lshl_b32 s56, s62, 2')
            a('v_add_u32 v7, s56, v7')
            a('v_mul_u32_u24 v7, 7168, v7')
            a('v_lshl_add_u32 v7, v8, 4, v7')
            a('s_mul_i32 s56, s53, 224')
            a(f'v_add_u32 v{VW}, s56, v7')
            a(f's_mul_i32 s58, s62, {K3_WB}')
            a('s_mov_b32 s40, 0xffffffff')
            a('s_mov_b32 s41, 0x00ffffff')
    waddr()
    a('v_lshlrev_b32 v4, 4, v2')
    a('v_lshlrev_b32 v5, 4, v0')
    a('v_lshlrev_b32 v6, 5, v0')
    a(f's_mul_i32 s60, s55, {Y2_BLK}')
    a('s_waitcnt lgkmcnt(0)')
    a('s_mov_b32 s28, s50')
    a('s_mov_b32 s29, s51')
    a('s_or_b32 s46, s46, 1')
    srd(a, 64, 28, 256*Y2_BLK, WS_Y2)
    srd(a, 72, 42, S*D*2)
    srd(a, 80, 28, 1 << 20)
    def y2acc_loads(fl):
        a('buffer_load_dwordx4 v[8:11], v6, s[64:67], s60 offen' + fl)
        a('buffer_load_dwordx4 v[12:15], v6, s[64:67], s60 offen offset:16' + fl)
        a(f's_mov_b32 s61, {WS_ACC}')
        a('buffer_load_dwordx4 v[16:19], v5, s[80:83], s61 offen' + fl)
        a(f's_mov_b32 s61, {WS_ACC+8192}')
        a('buffer_load_dwordx4 v[20:23], v5, s[80:83], s61 offen' + fl)
        a(f's_mov_b32 s61, {WS_ACC+16384}')
        a('buffer_load_dwordx4 v[24:27], v5, s[80:83], s61 offen' + fl)
    a('buffer_load_dwordx4 v[148:151], v4, s[72:75], s92 offen')
    a('buffer_load_dwordx4 v[152:155], v4, s[72:75], s92 offen offset:1024')
    srd(a, 24, 48, 256)
    if not fused:
        y2acc_loads('')
        a('v_mov_b32 v30, 0')
        a('buffer_load_dwordx2 v[116:117], v30, s[24:27], 0 offen sc1')
        a('s_add_u32 s61, s2, s62')
        a('s_cmp_lg_u32 s61, 0')
        a('s_cbranch_scc1 K3_NONONCE')
        a('v_mov_b32 v28, s46')
        a('v_mov_b32 v29, s47')
        a('v_mov_b32 v30, 0')
        a('s_mov_b64 exec, 1')
        a('buffer_store_dwordx2 v[28:29], v30, s[24:27], 0 offen sc1')
        a('s_mov_b64 exec, -1')
        a.L('K3_NONONCE')
    if WTILE:
        srd(a, 8, 28, 32*32*16384, WS_WGT)
        srd(a, 12, 28, 32*32*16384, WS_WGT)
    else:
        srd(a, 8, 4, D*F*2)
        srd(a, 12, 6, D*F*2)
    srd(a, 16, 28, S*D*2, WS_H2F)
    srd(a, 20, 28, S*D*2, WS_H2F)
    XR, WR, ACC = 64, 96, 128
    s_xoff, s_woff = 44, 45
    def xload1(slot, i, srd_):
        a(f'buffer_load_dwordx4 v[{XR+8*slot+4*i}:{XR+8*slot+4*i+3}], v{VX}, s[{srd_}:{srd_+3}], s{s_xoff} offen' + (' offset:1024' if i else '') + ' sc1')
        if i and 'x' not in X3: a(f's_add_u32 s{s_xoff}, s{s_xoff}, 2048')
    def xload(slot, srd_):
        xload1(slot, 0, srd_); xload1(slot, 1, srd_)
    def wdma1(stage_slot, ks, m, alt=False):
        if WTILE:
            a(f's_add_u32 m0, s58, {stage_slot*K3_STAGE + ks*K3_KS + 1024*m}')
            a('s_nop 0')
            a(f'buffer_load_dwordx4 v{VW2 if m else VW}, {"s[12:15]" if alt else "s[8:11]"}, s{s_woff} offen lds')
            if m: a(f's_add_u32 s{s_woff}, s{s_woff}, 16384')
        else:
            a(f's_add_u32 m0, s58, {stage_slot*K3_STAGE + ks*K3_KS + K3_MAT*m}')
            a('s_mov_b64 exec, s[40:41]')
            a(f'buffer_load_dwordx4 v{VW}, {"s[12:15]" if m else "s[8:11]"}, s{s_woff} offen lds')
            a('s_mov_b64 exec, -1')
            if m and 'w' not in X3: a(f's_add_u32 s{s_woff}, s{s_woff}, {32*7168}')
    def wdma(stage_slot, ks):
        wdma1(stage_slot, ks, 0); wdma1(stage_slot, ks, 1)
    a(f's_mov_b32 s{s_woff}, 0')
    X, N, T = 64, 80, 96
    srd(a, 84, 28, S*D*2, WS_X1)
    a('s_mov_b32 s78, 0x05040100')
    a('s_mov_b32 s79, 0x07060302')
    if fused:
        a('s_waitcnt vmcnt(2)')
        lds_add(a, C_FIN, 12, 13)
        lds_wait(a, C_FIN, 8, 12, 13, 'F1_WFIN')
        a('s_cmp_lg_u32 s62, 0')
        a('s_cbranch_scc1 F1_NOFLAG')
        a('v_and_b32 v12, 7, v0')
        a(f'v_mul_u32_u24 v12, {F1_REP}, v12')
        a('s_lshl_b32 s61, s2, 3')
        a(f's_add_u32 s61, s61, {WS_FLAG+4096}')
        a('s_mov_b64 exec, 0xff')
        a('buffer_store_dwordx2 v[156:157], v12, s[80:83], s61 offen sc1')
        a('s_mov_b64 exec, -1')
        a('v_mov_b32 v116, v156')
        a('v_mov_b32 v117, v157')
        a.L('F1_NOFLAG')
        stp()
        wdma(0, 0); wdma(0, 1)
        a(f'v_mov_b32 v{T+6}, 0x3a800000')
        a('s_waitcnt vmcnt(4)')
        for d in range(8): unpack2(a, 148+d, X+2*d, X+2*d+1, 63)
        layernorm(a, X, N, T)
        PFR = int(os.environ.get('PFROWS', '320'))
        a('s_cmp_lt_u32 s62, 4')
        a('s_cbranch_scc1 F1_NOPF')
        if REPACK == 'join':
            srd(a, 32, 30, F*D*2)
            a('s_sub_u32 s57, s62, 4')
            a('s_mul_i32 s57, s57, 7')
            a('s_mul_i32 s61, s2, 28672')
            a('s_lshl_b32 s56, s57, 10')
            a('s_add_u32 s61, s61, s56')
            for i in range(7):
                a(f'buffer_load_dwordx4 v[{176+4*i}:{179+4*i}], v4, s[32:35], s61 offen offset:{1024*(i%4)}')
                if i == 3: a('s_add_u32 s61, s61, 4096')
        nld = 0
        if PFR:
            per_wg = PFR*7168//128; per_w = per_wg//4; nld = (per_w + 1023)//1024
            a('s_cmp_lt_u32 s2, 128')
            a('s_cselect_b32 s36, s4, s6')
            a('s_cselect_b32 s37, s5, s7')
            a(f's_mov_b32 s38, {PFR*7168}')
            a(f's_mov_b32 s39, {SRD3}')
            a('s_and_b32 s61, s2, 127')
            a(f's_mul_i32 s61, s61, {per_wg}')
            a('s_sub_u32 s56, s62, 4')
            a(f's_mul_i32 s56, s56, {per_w}')
            a('s_add_u32 s61, s61, s56')
            for i in range(nld):
                a(f'buffer_load_dwordx4 v[{208+4*(i%8)}:{211+4*(i%8)}], v4, s[36:39], s61 offen offset:{1024*(i%4)}')
                if i % 4 == 3: a('s_add_u32 s61, s61, 4096')
        a.L('F1_NOPF')
        a('s_cmp_lg_u32 s62, 0')
        a('s_cbranch_scc1 F1_S1_SKIP')
        a('v_and_b32 v12, 63, v0')
        a('v_lshlrev_b32 v12, 5, v12')
        a('s_and_b32 s61, s2, 7')
        a(f's_mul_i32 s61, s61, {F1_REP}')
        a(f's_add_u32 s61, s61, {WS_FLAG+4096}')
        def ld1():
            a('buffer_load_dwordx4 v[16:19], v12, s[80:83], s61 offen sc1')
            a('buffer_load_dwordx4 v[20:23], v12, s[80:83], s61 offen offset:16 sc1')
        def cmp1():
            a('v_cmp_eq_u64 vcc, v[16:17], v[116:117]')
            a('v_cmp_eq_u64 s[56:57], v[18:19], v[116:117]')
            a('v_cmp_eq_u64 s[88:89], v[20:21], v[116:117]')
            a('v_cmp_eq_u64 s[76:77], v[22:23], v[116:117]')
            a('s_and_b64 vcc, vcc, s[56:57]')
            a('s_and_b64 s[88:89], s[88:89], s[76:77]')
            a('s_and_b64 vcc, vcc, s[88:89]')
        poll_loop(a, 'F1_P1', ld1, cmp1)
        a.L('F1_S1_SKIP')
        a('s_barrier')
        stp(); stp(); stp()
        y2acc_loads(' sc1')
    else:
        a('s_barrier')
        wdma(0, 0); wdma(0, 1)
    a(f'v_mov_b32 v{T+6}, 0x3a800000')
    a('v_lshlrev_b32 v6, 2, v0')
    a(f'v_add_u32 v6, {P2B}, v6')
    a('v_lshlrev_b32 v7, 3, v0')
    a(f'v_add_u32 v7, {P2B}, v7')
    if fused: a('s_waitcnt vmcnt(3)')
    else:
        a('s_waitcnt vmcnt(8)')
        stp()
    for r in range(8):
        sel = 's78' if r % 2 == 0 else 's79'
        a(f'v_perm_b32 v{104+r}, v{12+r//2}, v{8+r//2}, {sel}')
        a(f'ds_write_b32 v6, v{104+r} offset:{P2_T+r*2048}')
    if not fused:
        for d in range(8): unpack2(a, 148+d, X+2*d, X+2*d+1, 63)
        a('s_waitcnt vmcnt(4)')
    else:
        a('s_waitcnt vmcnt(0)')
    def conv_chunk(b, plus1):
        a(f'v_cvt_pk_bf16_f32 v{b}, v{b}, v{b+1}')
        a(f'v_cvt_pk_bf16_f32 v{b+1}, v{b+2}, v{b+3}')
        if plus1:
            unpack2(a, b, 112, 113, 63); unpack2(a, b+1, 114, 115, 63)
            for r in range(112, 116): a(f'v_add_f32 v{r}, 1.0, v{r}')
            a(f'v_cvt_pk_bf16_f32 v{b}, v112, v113')
            a(f'v_cvt_pk_bf16_f32 v{b+1}, v114, v115')
    a('s_cmp_ge_u32 s62, 4')
    a('s_cbranch_scc1 K3_M3')
    conv_chunk(16, False)
    conv_chunk(24, True)
    a(f'ds_write_b64 v7, v[24:25] offset:{P2_M+8192}')
    a('s_branch K3_M4')
    a.L('K3_M3')
    conv_chunk(16, True)
    a.L('K3_M4')
    conv_chunk(20, False)
    a(f'ds_write_b64 v7, v[16:17] offset:{P2_M}')
    a(f'ds_write_b64 v7, v[20:21] offset:{P2_M+4096}')
    if not fused: layernorm(a, X, N, T)
    a(f'v_add_u32 v4, {P2B}, v4')
    a('s_lshl_b32 s64, s62, 11')
    a('v_add_u32 v5, s64, v4')
    a('s_waitcnt lgkmcnt(0)')
    a('s_barrier')
    if not fused: stp()
    a(f'ds_read_b128 v[8:11], v5 offset:{P2_T}')
    a(f'ds_read_b128 v[12:15], v5 offset:{P2_T+1024}')
    for k in range(5):
        a(f'ds_read_b128 v[{24+8*k}:{24+8*k+3}], v4 offset:{P2_M+2048*k}')
        a(f'ds_read_b128 v[{24+8*k+4}:{24+8*k+7}], v4 offset:{P2_M+2048*k+1024}')
    a(f'v_subrev_u32 v4, {P2B}, v4')
    PP, QQ = 128, 160
    def unpack_vec(src, dst):
        for d in range(8): unpack2(a, src+d, dst+2*d, dst+2*d+1, 63)
    a('s_waitcnt lgkmcnt(6)')
    unpack_vec(24+8*1, PP); unpack_vec(24+8*0, QQ)
    for e in range(0, 16, 2): pk(a, 'v_pk_fma_f32', N+e, N+e, PP+e, QQ+e)
    a('s_waitcnt lgkmcnt(0)')
    unpack_vec(24+8*2, QQ)
    unpack_vec(8, PP)
    for e in range(0, 16, 2): pk(a, 'v_pk_mul_f32', N+e, N+e, PP+e)
    for e in range(0, 16, 2): pk(a, 'v_pk_fma_f32', X+e, N+e, QQ+e, X+e)
    for d in range(8): a(f'v_cvt_pk_bf16_f32 v{8+d}, v{X+2*d}, v{X+2*d+1}')
    unpack_vec(8, X)
    a('buffer_store_dwordx4 v[8:11], v4, s[84:87], s92 offen' + WT)
    a('buffer_store_dwordx4 v[12:15], v4, s[84:87], s92 offen offset:1024' + WT)
    layernorm(a, X, N, T)
    unpack_vec(24+8*4, PP); unpack_vec(24+8*3, QQ)
    for e in range(0, 16, 2): pk(a, 'v_pk_fma_f32', N+e, N+e, PP+e, QQ+e)
    for d in range(8): a(f'v_cvt_pk_bf16_f32 v{16+d}, v{N+2*d}, v{N+2*d+1}')
    a('v_and_b32 v5, 7, v2')
    a('v_xor_b32 v5, s62, v5')
    a('v_lshlrev_b32 v5, 4, v5')
    a('v_lshl_add_u32 v5, v2, 7, v5')
    a(f'v_add_u32 v5, {P2B}, v5')
    a(f'ds_write_b128 v5, v[16:19] offset:{P2_HS}')
    a(f'ds_write_b128 v5, v[20:23] offset:{P2_HS+8192}')
    a('v_lshlrev_b32 v5, 4, v0')
    a(f'v_add_u32 v5, {P2B}, v5')
    a('v_lshrrev_b32 v6, 3, v0')
    a('v_xor_b32 v7, v0, v6')
    a('v_and_b32 v7, 7, v7')
    a('v_lshlrev_b32 v7, 4, v7')
    a('v_and_b32 v3, 3, v6')
    a('v_lshl_add_u32 v7, v3, 8, v7')
    a('v_lshrrev_b32 v3, 2, v6')
    a('v_lshl_add_u32 v7, v3, 11, v7')
    a('s_lshr_b32 s64, s55, 2')
    a('s_lshl_b32 s64, s64, 16')
    a('s_bfe_u32 s65, s55, 0x10001')
    a('s_lshl_b32 s65, s65, 10')
    a('s_add_u32 s64, s64, s65')
    a('s_and_b32 s65, s55, 1')
    a('s_lshl_b32 s65, s65, 7')
    a('s_add_u32 s64, s64, s65')
    a('s_add_u32 s65, s64, 32768')
    a('s_waitcnt lgkmcnt(0)')
    a('s_barrier')
    a(f'ds_read_b128 v[16:19], v5 offset:{P2_HS}')
    a(f'ds_read_b128 v[20:23], v5 offset:{P2_HS+8192}')
    a('s_waitcnt lgkmcnt(1)')
    a('buffer_store_dwordx4 v[16:19], v7, s[16:19], s64 offen sc1')
    a('s_waitcnt lgkmcnt(0)')
    a('buffer_store_dwordx4 v[20:23], v7, s[16:19], s65 offen sc1')
    waddr()
    a('s_cmp_eq_u32 s62, 0')
    a('s_cbranch_scc1 K3_W0LATE')
    a(f's_mov_b32 s43, s{s_woff}')
    wdma(1, 0); wdma(1, 1); wdma(2, 0); wdma(2, 1)
    if W0BY1:
        a('s_cmp_lg_u32 s62, 1')
        a('s_cbranch_scc1 K3_NOT1')
        a(f's_mov_b32 s42, s{s_woff}')
        a(f's_mov_b32 s{s_woff}, s43')
        a(f'v_subrev_u32 v{VW}, {4*7168}, v{VW}')
        a(f's_sub_u32 s58, s58, {K3_WB}')
        wdma(1, 0); wdma(1, 1); wdma(2, 0); wdma(2, 1)
        a(f'v_add_u32 v{VW}, {4*7168}, v{VW}')
        a(f's_add_u32 s58, s58, {K3_WB}')
        a('s_waitcnt vmcnt(16)')
        a('s_branch K3_W0J')
        a.L('K3_NOT1')
    if fused and REPACK == 'join':
        a('s_cmp_lt_u32 s62, 4')
        a('s_cbranch_scc1 K3_NORS2')
        srd(a, 36, 28, F*D*2, WS_WDT)
        a('s_sub_u32 s57, s62, 4')
        a('s_mul_i32 s57, s57, 7')
        a('v_lshrrev_b32 v10, 3, v2')
        a('s_mov_b32 s61, 458752')
        a('v_mul_lo_u32 v10, s61, v10')
        a('v_and_b32 v13, 7, v2')
        a('v_lshl_add_u32 v10, v13, 4, v10')
        for i in range(7):
            a(f's_add_u32 s74, s57, {i}')
            a('s_lshr_b32 s75, s74, 1')
            a('s_mul_i32 s76, s2, 14')
            a('s_add_u32 s75, s75, s76')
            a('s_and_b32 s74, s74, 1')
            a('s_lshl_b32 s74, s74, 3')
            a('s_mul_i32 s74, s74, 458752')
            a('s_lshl_b32 s76, s75, 7')
            a('s_add_u32 s74, s74, s76')
            a('s_bfe_u32 s76, s75, 0x10001')
            a('s_bfe_u32 s77, s75, 0x10003')
            a('s_lshl_b32 s77, s77, 1')
            a('s_or_b32 s76, s76, s77')
            a('s_lshl_b32 s76, s76, 5')
            a('v_xor_b32 v13, s76, v10')
            a(f'buffer_store_dwordx4 v[{176+4*i}:{179+4*i}], v13, s[36:39], s74 offen' + (' sc1' if all1 else ''))
        a('s_waitcnt vmcnt(15)')
        a('s_branch K3_W0J')
        a.L('K3_NORS2')
    a('s_waitcnt vmcnt(8)')
    a('s_branch K3_W0J')
    a.L('K3_W0LATE')
    a('s_waitcnt vmcnt(0)')
    a.L('K3_W0J')
    stp()
    a('s_cmp_lg_u32 s62, 0')
    a('s_cbranch_scc1 K3_NONP')
    a('v_mov_b32 v30, 0')
    a('v_cmp_ne_u32 vcc, 0, v116')
    a('v_mov_b32 v28, v116')
    a('v_mov_b32 v29, v117')
    a('s_cmp_eq_u64 vcc, -1')
    a('s_cbranch_scc1 K3_NONP')
    def ld_nonce(): a('buffer_load_dwordx2 v[28:29], v30, s[24:27], 0 offen sc1')
    def cmp_nonce(): a('v_cmp_ne_u32 vcc, 0, v28')
    poll_loop(a, 'K3_PN', ld_nonce, cmp_nonce)
    a.L('K3_NONP')
    a('s_barrier')
    a('s_cmp_lg_u32 s62, 0')
    a('s_cbranch_scc1 K3_S2_SKIP')
    a('s_lshl_b32 s64, s55, 3')
    a(f's_add_u32 s64, s64, {WS_FLAG2}')
    a('s_mov_b64 exec, 1')
    a('buffer_store_dwordx2 v[28:29], v30, s[80:83], s64 offen sc1')
    a('s_mov_b64 exec, -1')
    a('v_and_b32 v30, 31, v0')
    a('v_lshlrev_b32 v30, 3, v30')
    a('s_lshl_b32 s64, s52, 8')
    a(f's_add_u32 s64, s64, {WS_FLAG2}')
    def ld2(): a('buffer_load_dwordx2 v[26:27], v30, s[80:83], s64 offen sc1')
    def cmp2(): a('v_cmp_eq_u64 vcc, v[26:27], v[28:29]')
    poll_loop(a, 'K3_P2', ld2, cmp2)
    if W0BY1: a(f's_add_u32 s{s_woff}, s{s_woff}, {4*32*7168}')
    else:
        wdma(1, 0); wdma(1, 1); wdma(2, 0); wdma(2, 1)
    a.L('K3_S2_SKIP')
    a('s_barrier')
    stp()
    a('s_lshl_b32 s56, s52, 3')
    a('s_add_u32 s56, s56, s62')
    a('s_lshl_b32 s57, s56, 16')
    a('v_lshlrev_b32 v7, 4, v2')
    a(f'v_add_u32 v{VX}, s57, v7')
    a(f's_mov_b32 s{s_xoff}, 0')
    xload(0, 16); xload(1, 16); xload(2, 16)
    a('v_lshrrev_b32 v7, 4, v2')
    a(f'v_mul_u32_u24 v7, {2*K3_WB}, v7')
    a('v_bfe_u32 v8, v2, 2, 2')
    a('v_mul_u32_u24 v8, 224, v8')
    a('v_add_u32 v7, v7, v8')
    a('v_and_b32 v8, 3, v2')
    a(f'v_lshl_add_u32 v{VA0}, v8, 3, v7')
    a(f'v_add_u32 v{VA1}, {2*K3_STAGE}, v{VA0}')
    srd(a, 24, 28, S*F*2, WS_HF)
    srd(a, 32, 30, F*D*2)
    srd(a, 36, 28, F*D*2, WS_WDT)
    a('s_mul_i32 s73, s2, 28672')
    a('s_lshl_b32 s74, s62, 12')
    a('s_add_u32 s73, s73, s74')
    a('v_lshlrev_b32 v12, 4, v2')
    a('v_lshrrev_b32 v10, 3, v2')
    a('s_mov_b32 s74, 458752')
    a('v_mul_lo_u32 v10, s74, v10')
    a('v_and_b32 v13, 7, v2')
    a('v_lshl_add_u32 v10, v13, 4, v10')
    def repack_stores(flags):
        for i in range(4):
            a(f's_lshl_b32 s74, s62, 2')
            a(f's_add_u32 s74, s74, {i}')
            a('s_lshr_b32 s75, s74, 1')
            a('s_mul_i32 s76, s2, 14')
            a('s_add_u32 s75, s75, s76')
            a('s_and_b32 s74, s74, 1')
            a('s_lshl_b32 s74, s74, 3')
            a('s_mul_i32 s74, s74, 458752')
            a('s_lshl_b32 s76, s75, 7')
            a('s_add_u32 s74, s74, s76')
            a('s_bfe_u32 s76, s75, 0x10001')
            a('s_bfe_u32 s77, s75, 0x10003')
            a('s_lshl_b32 s77, s77, 1')
            a('s_or_b32 s76, s76, s77')
            a('s_lshl_b32 s76, s76, 5')
            a('v_xor_b32 v13, s76, v10')
            a(f'buffer_store_dwordx4 v[{48+4*i}:{51+4*i}], v13, s[36:39], s74 offen' + flags)
    for r in range(112): a(f'v_mov_b32 v{ACC+r}, 0')
    def frag_addr(kstep_in_body, f, h):
        kb = kstep_in_body % 8
        st, ks = kb >> 1, kb & 1
        jt, m = f >> 1, f & 1
        base = VA0 if st < 2 else VA1
        off = (st & 1)*K3_STAGE + ks*K3_KS + m*K3_MAT + h*K3_WB + 32*jt
        return base, off
    def rd(kb, f, h):
        base, off = frag_addr(kb, f, h)
        sl = f % 7
        a(f'ds_read_b64_tr_b16 v[{WR+4*sl+2*h}:{WR+4*sl+2*h+1}], v{base} offset:{off}')
    a('s_waitcnt vmcnt(0)')
    a('s_barrier')
    stp()
    if all1 and REPACK == 'join':
        a('s_cmp_lg_u32 s62, 0')
        a('s_cbranch_scc1 K3_NOFR')
        a('v_and_b32 v14, 7, v2')
        a(f'v_mul_u32_u24 v14, {F1_REP}, v14')
        a('s_lshl_b32 s74, s2, 3')
        a(f's_add_u32 s74, s74, {WS_FLAGR}')
        a('s_mov_b64 exec, 0xff')
        a('buffer_store_dwordx2 v[28:29], v14, s[80:83], s74 offen sc1')
        a('s_mov_b64 exec, -1')
        a.L('K3_NOFR')
    for f in range(PD):
        rd(0, f, 0); rd(0, f, 1)
    a('s_mov_b32 s46, 4')
    a('s_lshr_b32 s47, s62, 2')
    if os.environ.get('PRIO'):
        a('s_cmp_eq_u32 s47, 0')
        a('s_cbranch_scc1 K3_NOPRIO')
        a('s_setprio 1')
        a.L('K3_NOPRIO')
    a('s_branch K3_ENTRY')
    a.L('K3_LOOP')
    lab = [0]
    def guarded(half, fn):
        if half is None: fn(); return
        lab[0] += 1; L = f'K3_G{lab[0]}'
        a(f's_cmp_lg_u32 s47, {half}')
        a(f's_cbranch_scc1 {L}')
        fn()
        a.L(L)
    for kb in range(8):
        st, ks = kb >> 1, kb & 1
        def vwait(n, extra_flag):
            if extra_flag is None:
                a(f's_waitcnt vmcnt({n})'); return
            lab[0] += 1; L1 = f'K3_W{lab[0]}a'; L2 = f'K3_W{lab[0]}b'
            a(f's_cmp_eq_u32 s{extra_flag}, 1')
            a(f's_cbranch_scc1 {L1}')
            a(f's_waitcnt vmcnt({n})')
            a(f's_branch {L2}')
            a.L(L1)
            a(f's_waitcnt vmcnt({n+4})')
            a.L(L2)
        xf = None
        if REPACK == 'mid':
            if kb in (3, 4): xf = 48
            if kb == 7: xf = 48
            if kb == 0: xf = 49
        if ks == 0:
            vwait(8, xf)
            a('s_barrier')
            if kb == 0:
                a.L('K3_ENTRY')
                a('s_cmp_eq_u32 s46, 1')
                a(f's_cselect_b32 s22, 0, {S*D*2}')
                if WTILE: a(f's_cselect_b32 s14, 0, {32*32*16384}')
                if REPACK == 'mid':
                    a(f's_cmp_eq_u32 s46, {RP_IT}')
                    a('s_cselect_b32 s48, 1, 0')
                    a('s_cmp_eq_u32 s62, 7')
                    a('s_cselect_b32 s48, 0, s48')
        else:
            vwait(10, xf)
        if TAILOV and kb == 4:
            a('s_cmp_eq_u32 s46, 1')
            a('s_cbranch_scc1 K3_TAIL')
        if REPACK == 'mid' and kb == 2:
            a('s_cmp_lg_u32 s48, 1')
            a('s_cbranch_scc1 K3_NORL')
            for i in range(4):
                a(f'buffer_load_dwordx4 v[{48+4*i}:{51+4*i}], v12, s[32:35], s73 offen offset:{1024*i}')
            a.L('K3_NORL')
        if REPACK == 'mid' and kb == 6:
            a('s_cmp_lg_u32 s48, 1')
            a('s_cbranch_scc1 K3_NORS')
            a('s_waitcnt vmcnt(16)')
            repack_stores(' sc1' if all1 else '')
            a.L('K3_NORS')
        if CODEPF and kb == 4:
            a('s_cmp_lg_u32 s46, 1')
            a('s_cbranch_scc1 K3_NOCPF2')
            a('s_cmp_lg_u32 s62, 2')
            a('s_cbranch_scc1 K3_NOCPF2')
            code_prefetch(a, 'K3_EPI', 'K3_END', 96, 14, 16, 1, 'K3B')
            a.L('K3_NOCPF2')
        if all1 and REPACK == 'mid' and kb == 2:
            a(f's_cmp_lg_u32 s46, {RP_IT-1}')
            a('s_cbranch_scc1 K3_NOFR')
            a('s_cmp_lg_u32 s62, 0')
            a('s_cbranch_scc1 K3_NOFR')
            a('v_and_b32 v14, 7, v2')
            a(f'v_mul_u32_u24 v14, {F1_REP}, v14')
            a('s_lshl_b32 s74, s2, 3')
            a(f's_add_u32 s74, s74, {WS_FLAGR}')
            a('s_mov_b64 exec, 0xff')
            a('buffer_store_dwordx2 v[28:29], v14, s[80:83], s74 offen sc1')
            a('s_mov_b64 exec, -1')
            a.L('K3_NOFR')
        if all1 and kb == 4:
            a('s_cmp_lg_u32 s46, 1')
            a('s_cbranch_scc1 K3_NOER')
            a('s_cmp_lg_u32 s62, 0')
            a('s_cbranch_scc1 K3_NOER')
            a('v_lshlrev_b32 v14, 5, v2')
            a('s_and_b32 s74, s2, 7')
            a(f's_mul_i32 s74, s74, {F1_REP}')
            a(f's_add_u32 s74, s74, {WS_FLAGR}')
            a('buffer_load_dwordx4 v[48:51], v14, s[80:83], s74 offen sc1')
            a('buffer_load_dwordx4 v[52:55], v14, s[80:83], s74 offen offset:16 sc1')
            a.L('K3_NOER')
        xs = kb % 4
        xn = (kb + 3) % 4
        xsrd = 16 if kb + 3 < 8 else 20
        ops = [lambda: xload1(xn, 0, xsrd), lambda: xload1(xn, 1, xsrd),
               lambda: wdma1((st + 3) % 4, ks, 0, st != 0), lambda: wdma1((st + 3) % 4, ks, 1, st != 0)]
        for f in range(14):
            jt, m = f >> 1, f & 1
            sl = f % 7
            a(f's_waitcnt lgkmcnt({2*(PD-1)})')
            nf = f + PD
            nkb, nf2 = (kb, nf) if nf < 14 else (kb + 1, nf - 14)
            for tt in range(2):
                ac = ACC + ((m*7 + jt)*2 + tt)*4
                if 'M' not in X3: a(f'v_mfma_f32_16x16x32_bf16 v[{ac}:{ac+3}], v[{WR+4*sl}:{WR+4*sl+3}], v[{XR+8*xs+4*tt}:{XR+8*xs+4*tt+3}], v[{ac}:{ac+3}]')
                if 'R' not in X3: rd(nkb, nf2, tt)
            if 'V' not in X3:
                for k_, op in enumerate(ops):
                    if STAG:
                        if f == POS_A[k_]: guarded(0, op)
                        if f == POS_B[k_]: guarded(1, op)
                    elif f == POS_A[k_]: op()
            if TAILOV and kb == 3 and f == 6:
                a('s_cmp_lg_u32 s46, 1')
                a('s_cbranch_scc1 K3_NOX31')
                a(f'buffer_load_dwordx4 v[48:51], v{VX}, s[16:19], s{s_xoff} offen sc1')
                a(f'buffer_load_dwordx4 v[52:55], v{VX}, s[16:19], s{s_xoff} offen offset:1024 sc1')
                a.L('K3_NOX31')
    if REPACK == 'mid': a('s_mov_b32 s49, s48')
    a('s_sub_u32 s46, s46, 1')
    a('s_cmp_lg_u32 s46, 0')
    a('s_cbranch_scc1 K3_LOOP')
    import struct
    c1 = -2*1.4426950408889634*0.7978845608028654
    c2 = c1*0.044715
    f2u = lambda x: struct.unpack('<I', struct.pack('<f', x))[0]
    def epi_setup():
        a('v_and_b32 v7, 15, v2')
        a('v_lshlrev_b32 v7, 4, v7')
        a('v_bfe_u32 v8, v2, 4, 1')
        a('v_lshl_add_u32 v7, v8, 10, v7')
        a('v_lshrrev_b32 v8, 5, v2')
        a('v_lshl_add_u32 v7, v8, 8, v7')
        a('s_mul_i32 s57, s56, 229376')
        a('v_add_u32 v7, s57, v7')
        a('s_mul_i32 s59, s53, 7')
        a(f's_mov_b32 s66, {f2u(c2):#x}')
        a(f's_mov_b32 s67, {f2u(c2):#x}')
        a(f'v_mov_b32 v8, {f2u(c1):#x}')
        a(f'v_mov_b32 v9, {f2u(c1):#x}')
    T = 16
    def epi_list(jt):
        L = []
        ob = 32 + 4*(jt % 4)
        for tt in range(2):
            G = ACC + ((0*7 + jt)*2 + tt)*4
            U = ACC + ((1*7 + jt)*2 + tt)*4
            for rp in range(2):
                g0, u0 = G+2*rp, U+2*rp
                t = T + 2*((2*tt+rp) % 4)
                L += [f'v_pk_mul_f32 v[{t}:{t+1}], v[{g0}:{g0+1}], v[{g0}:{g0+1}]',
                      f'v_pk_fma_f32 v[{t}:{t+1}], v[{t}:{t+1}], s[66:67], v[8:9]',
                      f'v_pk_mul_f32 v[{t}:{t+1}], v[{t}:{t+1}], v[{g0}:{g0+1}]',
                      f'v_exp_f32 v{t}, v{t}', f'v_exp_f32 v{t+1}, v{t+1}',
                      f'v_pk_mul_f32 v[{g0}:{g0+1}], v[{g0}:{g0+1}], v[{u0}:{u0+1}]',
                      f'v_pk_add_f32 v[{t}:{t+1}], v[{t}:{t+1}], 1.0 op_sel_hi:[1,0]',
                      f'v_rcp_f32 v{t}, v{t}', f'v_rcp_f32 v{t+1}, v{t+1}',
                      f'v_pk_mul_f32 v[{g0}:{g0+1}], v[{g0}:{g0+1}], v[{t}:{t+1}]',
                      f'v_cvt_pk_bf16_f32 v{ob+2*tt+rp}, v{g0}, v{g0+1}']
        L += [f'v_permlane16_swap_b32 v{ob}, v{ob+2}', f'v_permlane16_swap_b32 v{ob+1}, v{ob+3}',
              f's_add_u32 s60, s59, {jt}', 's_lshr_b32 s61, s60, 1', 's_lshl_b32 s61, s61, 11',
              's_and_b32 s60, s60, 1', 's_lshl_b32 s60, s60, 9', 's_add_u32 s60, s60, s61',
              f'buffer_store_dwordx4 v[{ob}:{ob+3}], v7, s[24:27], s60 offen' + WT]
        return L
    if not TAILOV:
        a('s_waitcnt lgkmcnt(0)')
        stp()
        a.L('K3_EPI')
        if all1:
            a('s_cmp_lg_u32 s62, 0')
            a('s_cbranch_scc1 K3_R_OK')
            a('s_waitcnt vmcnt(0)')
            def cmpr():
                a('v_cmp_eq_u64 vcc, v[48:49], v[28:29]')
                a('v_cmp_eq_u64 s[76:77], v[50:51], v[28:29]')
                a('v_cmp_eq_u64 s[88:89], v[52:53], v[28:29]')
                a('v_cmp_eq_u64 s[78:79], v[54:55], v[28:29]')
                a('s_and_b64 vcc, vcc, s[76:77]')
                a('s_and_b64 s[88:89], s[88:89], s[78:79]')
                a('s_and_b64 vcc, vcc, s[88:89]')
            cmpr()
            a('s_cmp_eq_u64 vcc, -1')
            a('s_cbranch_scc1 K3_R_OK')
            def ldr():
                a('buffer_load_dwordx4 v[48:51], v14, s[80:83], s74 offen sc1')
                a('buffer_load_dwordx4 v[52:55], v14, s[80:83], s74 offen offset:16 sc1')
            poll_loop(a, 'K3_PR', ldr, cmpr)
            a.L('K3_R_OK')
            a('s_barrier')
            srd(a, 8, 28, F*D*2, WS_WDT)
            a('s_and_b32 s74, s2, 7')
            a('s_lshr_b32 s74, s74, 2')
            a('s_lshl_b32 s74, s74, 3')
            a('s_lshr_b32 s75, s2, 5')
            a('s_add_u32 s74, s74, s75')
            a('s_mul_i32 s74, s74, 458752')
            a('s_lshl_b32 s75, s62, 11')
            a('s_add_u32 s74, s74, s75')
            a('v_lshlrev_b32 v3, 4, v2')
            a('v_add_u32 v3, s74, v3')
            a('s_mov_b32 s76, 0')
            for i_ in range(2):
                for h_ in range(2):
                    a(f's_add_u32 m0, s75, {i_*16384 + 1024*h_}')
                    a('s_nop 0')
                    a('buffer_load_dwordx4 v3, s[8:11], s76 offen sc1 lds' if h_ == 0 else 'buffer_load_dwordx4 v3, s[8:11], s77 offen sc1 lds')
                    if h_ == 0: a('s_add_u32 s77, s76, 1024')
                a('s_add_u32 s76, s76, 16384')
        epi_setup()
        a('s_nop 7')
        for jt in range(7):
            for l in epi_list(jt): a(l)
    else:
        a.L('K3_TAIL')
        a.L('K3_EPI')
        a('s_waitcnt lgkmcnt(0)')
        epi_setup()
        FL = [(jt, q, m) for jt in range(7) for q in range(4) for m in range(2)]
        def trd(idx, h):
            jt, q, m = FL[idx]
            base, off = frag_addr(4 + q, 2*jt + m, h)
            sl = idx % 7
            a(f'ds_read_b64_tr_b16 v[{WR+4*sl+2*h}:{WR+4*sl+2*h+1}], v{base} offset:{off}')
        for i in range(PD): trd(i, 0); trd(i, 1)
        pend = []
        for idx, (jt, q, m) in enumerate(FL):
            if idx == 4: a('s_waitcnt vmcnt(4)')
            if idx == 6: a('s_waitcnt vmcnt(0)')
            rem = min(PD, len(FL) - idx) - 1
            a(f's_waitcnt lgkmcnt({2*rem})')
            sl = idx % 7
            xb = XR + 8*q if q < 3 else 48
            for tt in range(2):
                ac = ACC + ((m*7 + jt)*2 + tt)*4
                a(f'v_mfma_f32_16x16x32_bf16 v[{ac}:{ac+3}], v[{WR+4*sl}:{WR+4*sl+3}], v[{xb+4*tt}:{xb+4*tt+3}], v[{ac}:{ac+3}]')
                if idx + PD < len(FL): trd(idx + PD, tt)
            if idx % 8 == 0 and jt > 0: pend = epi_list(jt - 1)
            if pend and idx % 8 >= 1:
                n = (len(pend) + (7 - idx % 8)) // (8 - idx % 8)
                for l in pend[:n]: a(l)
                pend = pend[n:]
        stp()
        a('s_nop 7')
        for l in epi_list(6): a(l)
    if all1:
        a('s_lshl_b32 s93, s55, 3')
        a(f's_add_u32 s93, s93, {WS_FLAG3}')
        from k4 import gen_k4
        stp(); stp()
        gen_k4(name, a=a, fused=True, stp=stp)
    stp()
    if STAMP: a('s_waitcnt vmcnt(0)')
    stp(); stp.flush()
    a.L('K3_END')
    if fused: a.L('FE_END')
    a('s_endpgm')
    txt, n = a.finalize()
    return txt, 256
```

```python
from common import *

K4_STAGE = 16384
NS4 = 4
DIST4 = int(os.environ.get('DIST4', '2'))
K4_LDS = NS4*16384
PF4ON = os.environ.get('PF4ON', '0') == '1'
PD4 = int(os.environ.get('PD4', '4'))

X4 = os.environ.get('X4', '')
def gen_k4(name, faithful=True, a=None, fused=False, stp=None):
    if not fused:
        a = Asm()
        kernel_begin(a, name)
        a('s_cmp_ge_u32 s2, 256')
        a('s_cbranch_scc1 K4_END')
        stp = Stamps(a, 1 if os.environ.get('FUSE1', '1') == '1' else 2, 62); stp()
    SC = ' sc1' if fused else ''
    a(f's_load_dwordx2 s[4:5], s[0:1], {B_WD}')
    a(f's_load_dwordx2 s[6:7], s[0:1], {A_OUT}')
    a(f's_load_dwordx2 s[28:29], s[0:1], {A_WS}')
    a('v_lshrrev_b32 v1, 6, v0')
    a('s_mov_b32 s63, 0xffff0000')
    a('v_readfirstlane_b32 s62, v1')
    a('v_and_b32 v2, 63, v0')
    a('s_and_b32 s50, s2, 7')
    a('s_lshr_b32 s51, s2, 3')
    a('s_and_b32 s52, s50, 3')
    a('s_lshl_b32 s52, s52, 2')
    a('s_and_b32 s53, s51, 3')
    a('s_add_u32 s52, s52, s53')
    a('s_lshr_b32 s53, s50, 2')
    a('s_lshl_b32 s53, s53, 3')
    a('s_lshr_b32 s54, s51, 2')
    a('s_add_u32 s53, s53, s54')
    a('s_waitcnt lgkmcnt(0)')
    srd(a, 8, 28, F*D*2, WS_WDT)
    srd(a, 12, 6, S*D*2)
    srd(a, 16, 28, S*F*2, WS_HF)
    srd(a, 20, 28, S*D*2, WS_X1)
    srd(a, 24, 28, 6144*4, WS_ACC)
    a('s_and_b32 s55, s62, 3')
    a('s_lshr_b32 s56, s62, 2')
    VW0, VW1, VH = 3, 4, 5
    VA = 16
    a('s_mul_i32 s57, s53, 458752')
    a('s_lshl_b32 s59, s62, 11')
    a('s_add_u32 s57, s57, s59')
    a('v_lshlrev_b32 v10, 4, v2')
    a(f'v_add_u32 v{VW0}, s57, v10')
    a(f'v_add_u32 v{VW1}, 1024, v{VW0}')
    a('s_lshl_b32 s57, s52, 2')
    a('s_add_u32 s57, s57, s55')
    a('s_mul_i32 s57, s57, 229376')
    a('s_lshl_b32 s58, s56, 12')
    a('s_add_u32 s57, s57, s58')
    a('v_lshlrev_b32 v10, 4, v2')
    a(f'v_add_u32 v{VH}, s57, v10')
    a('v_lshrrev_b32 v10, 4, v2')
    a('v_bfe_u32 v11, v2, 2, 2')
    a('v_lshl_add_u32 v12, v10, 3, v11')
    a('v_lshlrev_b32 v12, 7, v12')
    a('v_lshrrev_b32 v11, 1, v11')
    a('v_and_b32 v10, 1, v10')
    a('v_lshl_or_b32 v11, v10, 1, v11')
    a('v_lshl_add_u32 v12, v11, 5, v12')
    a('v_and_b32 v11, 3, v2')
    a('v_lshl_add_u32 v12, v11, 3, v12')
    a('s_lshl_b32 s58, s56, 13')
    a('v_add_u32 v12, s58, v12')
    for jt in range(4): a(f'v_xor_b32 v{VA+jt}, {jt<<5}, v12')
    a('s_lshl_b32 s58, s62, 11')
    if PF4ON:
        a('s_and_b32 s60, s50, 3')
        a('s_lshl_b32 s60, s60, 4')
        a('s_lshr_b32 s61, s51, 1')
        a('s_add_u32 s60, s60, s61')
        a('s_mul_i32 s60, s60, 229376')
        a('s_and_b32 s61, s51, 1')
        a('s_lshl_b32 s61, s61, 12')
        a('s_add_u32 s60, s60, s61')
        a('s_lshl_b32 s61, s62, 9')
        a('s_add_u32 s60, s60, s61')
        a('v_lshlrev_b32 v24, 7, v2')
        a('v_add_u32 v25, s60, v24')
        a('v_bfrev_b32 v26, 1')
        a('v_cmp_gt_u32 vcc, 4, v2')
        a('v_cndmask_b32 v25, v26, v25, vcc')
        a('s_lshr_b32 s60, s50, 2')
        a('s_lshl_b32 s60, s60, 3')
        a('s_lshr_b32 s64, s51, 2')
        a('s_add_u32 s60, s60, s64')
        a('s_mul_i32 s60, s60, 458752')
        a('s_and_b32 s64, s51, 3')
        a('s_lshl_b32 s64, s64, 12')
        a('s_add_u32 s60, s60, s64')
        a('s_add_u32 s60, s60, s61')
        a('v_add_u32 v27, s60, v24')
        a('v_cndmask_b32 v27, v26, v27, vcc')
        PFS = int(os.environ.get('PF4', '4'))
        a(f's_mov_b32 s66, {PFS-1}')
    HR, WR, ACC = 32, 96, 128
    s_hoff, s_woff = 44, 45
    def hload1(slot, i, srd_=16):
        if 'H' in X4: srd_ = 36
        a(f'buffer_load_dwordx4 v[{HR+16*slot+4*i}:{HR+16*slot+4*i+3}], v{VH}, s[{srd_}:{srd_+3}], s{s_hoff} offen offset:{1024*i}' + SC)
        if i == 3: a(f's_add_u32 s{s_hoff}, s{s_hoff}, 8192')
    def wdma1(slot, i, alt=False):
        WS_ = 's[36:39]' if 'W' in X4 else ('s[40:43]' if alt else 's[8:11]')
        a(f's_add_u32 m0, s58, {slot*K4_STAGE+1024*i}')
        a('s_nop 0')
        a(f'buffer_load_dwordx4 v{VW0 if i == 0 else VW1}, {WS_}, s{s_woff} offen' + nt('d') + SC + ' lds')
        if i == 1: a(f's_add_u32 s{s_woff}, s{s_woff}, 16384')
    a(f's_mov_b32 s{s_hoff}, 0')
    a(f's_mov_b32 s{s_woff}, 0')
    srd(a, 32, 28, S*F*2, WS_HF)
    srd(a, 36, 28, 0, WS_HF)
    srd(a, 40, 28, F*D*2, WS_WDT)
    srd(a, 68, 28, S*F*2, WS_HF)
    srd(a, 72, 28, F*D*2, WS_WDT)
    def pf4():
        a('s_cmp_lt_u32 s66, 28')
        a(f's_cselect_b32 s70, {S*F*2}, 0')
        a(f's_cselect_b32 s74, {F*D*2}, 0')
        a('s_lshl_b32 s64, s66, 13')
        a('buffer_load_dword v28, v25, s[68:71], s64 offen')
        a('s_lshl_b32 s64, s66, 14')
        a('buffer_load_dword v28, v27, s[72:75], s64 offen')
        a('s_add_u32 s66, s66, 1')
    if not fused:
        for i in range(DIST4):
            if PF4ON and i >= 1: pf4()
            wdma1(i, 0); wdma1(i, 1)
            for j in range(4): hload1(i, j)
            if i == 0: a('s_barrier')
    else:
        from fe import poll_loop, F1_REP
        from k3 import WS_FLAG3, WS_FLAGR
        assert DIST4 == 2
        a('s_waitcnt vmcnt(0)')
        a('s_barrier')
        a('s_cmp_lg_u32 s62, 0')
        a('s_cbranch_scc1 K4_WJ')
        a('v_mov_b32 v12, 0')
        a('s_mov_b64 exec, 1')
        a('buffer_store_dwordx2 v[28:29], v12, s[80:83], s93 offen sc1')
        a('s_mov_b64 exec, -1')
        a('v_and_b32 v12, 31, v0')
        a('v_lshlrev_b32 v12, 3, v12')
        a('s_lshr_b32 s61, s52, 1')
        a('s_lshl_b32 s61, s61, 8')
        a(f's_add_u32 s61, s61, {WS_FLAG3}')
        def ld3(): a('buffer_load_dwordx2 v[32:33], v12, s[80:83], s61 offen sc1')
        def cmp3(): a('v_cmp_eq_u64 vcc, v[32:33], v[28:29]')
        poll_loop(a, 'K4_P3', ld3, cmp3)
        a.L('K4_WJ')
        a('s_barrier')
        stp()
        a(f's_mov_b32 s{s_woff}, {2*16384}')
        for i in range(2):
            for j in range(4): hload1(i, j)
    if CODEPF and not fused:
        a('s_cmp_lg_u32 s62, 2')
        a('s_cbranch_scc1 K4_NOCPF')
        code_prefetch(a, name, 'TEXT_END', 96, 29, 31, 1, 'K4')
        a.L('K4_NOCPF')
    for r in range(32): a(f'v_mov_b32 v{ACC+r}, 0')
    def rd(st, f, h):
        st %= NS4
        ks, jt = f >> 2, f & 3
        off = st*K4_STAGE + ks*4096 + h*512
        sl = f % 8
        a(f'ds_read_b64_tr_b16 v[{WR+4*sl+2*h}:{WR+4*sl+2*h+1}], v{VA+jt} offset:{off}')
    if fused: a('s_waitcnt vmcnt(4)')
    else: stp()
    a(f's_mov_b32 s46, {28//NS4}')
    a.L('K4_LOOP')
    a('s_cmp_eq_u32 s46, 1')
    a(f's_cselect_b32 s34, 0, {S*F*2}')
    a(f's_cselect_b32 s42, 0, {F*D*2}')
    for st in range(NS4):
        a(f's_waitcnt vmcnt({(8 if PF4ON else 6)*(DIST4-1)})')
        a('s_barrier')
        if PF4ON: pf4()
        for f in range(PD4):
            rd(st, f, 0); rd(st, f, 1)
        pslot = (st + DIST4) % NS4
        hs = 16 if st + DIST4 < NS4 else 32
        vm = [('w', 0), ('h', 0), ('h', 1), ('w', 1), ('h', 2), ('h', 3)]
        def vmem(k):
            kind, i = vm[k]
            if kind == 'w': wdma1(pslot, i, hs == 32)
            else: hload1(pslot, i, hs)
        VMP = [int(z) for z in os.environ.get('VMP', '-1,0,1,2,3,4').split(',')]
        for k_ in range(6):
            if VMP[k_] == -1: vmem(k_)
        for f in range(8):
            ks, jt = f >> 2, f & 3
            sl = f % 8
            outstanding = 2*(min(f + PD4, 8) - f - 1)
            a(f's_waitcnt lgkmcnt({outstanding})')
            nf = f + PD4
            for tt in range(2):
                ac = ACC + (jt*2 + tt)*4
                hb = HR + 16*st + 8*ks + 4*tt
                if 'M' not in X4: a(f'v_mfma_f32_16x16x32_bf16 v[{ac}:{ac+3}], v[{WR+4*sl}:{WR+4*sl+3}], v[{hb}:{hb+3}], v[{ac}:{ac+3}]')
                if nf < 8 and 'R' not in X4: rd(st, nf, tt)
            for k_ in range(6):
                if VMP[k_] == f: vmem(k_)
    a('s_sub_u32 s46, s46, 1')
    a('s_cmp_lg_u32 s46, 0')
    a('s_cbranch_scc1 K4_LOOP')
    a('s_waitcnt vmcnt(0) lgkmcnt(0)')
    a('s_barrier')
    stp()
    a('v_and_b32 v10, 15, v2')
    a('v_lshrrev_b32 v11, 4, v2')
    a('v_xor_b32 v11, v11, v10')
    a('v_lshlrev_b32 v11, 4, v11')
    a('v_lshl_add_u32 v11, v10, 8, v11')
    a('s_lshl_b32 s57, s56, 15')
    a('s_lshl_b32 s59, s55, 13')
    a('s_add_u32 s57, s57, s59')
    a('v_add_u32 v11, s57, v11')
    for jt in range(4):
        a(f'v_xor_b32 v12, {jt*64}, v11')
        for tt in range(2):
            ac = ACC + (jt*2 + tt)*4
            a(f'ds_write_b128 v12, v[{ac}:{ac+3}] offset:{tt*4096}')
    a('v_lshrrev_b32 v13, 3, v0')
    a('v_and_b32 v14, 7, v0')
    a('s_lshl_b32 s57, s52, 7')
    a('v_add_u32 v15, s57, v13')
    a('v_lshlrev_b32 v15, 11, v15')
    a('v_lshl_add_u32 v15, v14, 4, v15')
    a('s_lshl_b32 s57, s53, 7')
    a('v_add_u32 v15, s57, v15')
    a(f's_mov_b32 s59, {64*2048}')
    a('buffer_load_dwordx4 v[16:19], v15, s[20:23], 0 offen' + SC)
    a('buffer_load_dwordx4 v[20:23], v15, s[20:23], s59 offen' + SC)
    a('v_lshlrev_b32 v24, 5, v14')
    a('s_lshl_b32 s57, s57, 1')
    a(f's_add_u32 s57, s57, {5*4096}')
    a('buffer_load_dwordx4 v[32:35], v24, s[24:27], s57 offen' + SC)
    a('buffer_load_dwordx4 v[36:39], v24, s[24:27], s57 offen offset:16' + SC)
    a('s_waitcnt lgkmcnt(0)')
    a('s_barrier')
    a('v_and_b32 v24, 15, v13')
    a('v_lshlrev_b32 v25, 1, v14')
    a('v_xor_b32 v25, v25, v24')
    a('v_lshlrev_b32 v25, 4, v25')
    a('v_lshl_add_u32 v25, v13, 8, v25')
    a('v_xor_b32 v26, 16, v25')
    GB = list(range(32, 40))
    a('s_waitcnt vmcnt(0)')
    for d in range(4): rnd2(a, GB[2*d], GB[2*d+1], 28, 63, True)
    if os.environ.get('EPS'):
        import struct
        ev = struct.unpack('<I', struct.pack('<f', 1.0+float(os.environ['EPS'])))[0]
        for e in range(8): a(f'v_mul_f32 v{GB[e]}, {ev:#x}, v{GB[e]}')
    for j in range(2):
        o = j*64*256
        a(f'ds_read_b128 v[40:43], v25 offset:{o}')
        a(f'ds_read_b128 v[44:47], v26 offset:{o}')
        a(f'ds_read_b128 v[48:51], v25 offset:{o+32768}')
        a(f'ds_read_b128 v[52:55], v26 offset:{o+32768}')
        a('s_waitcnt lgkmcnt(0)')
        for e in range(8): a(f'v_add_f32 v{40+e}, v{40+e}, v{48+e}')
        for e in range(0, 8, 2): rnd2(a, 40+e, 41+e, 56, 63, True)
        for e in range(8): a(f'v_mul_f32 v{40+e}, v{40+e}, v{GB[e]}')
        for e in range(0, 8, 2): rnd2(a, 40+e, 41+e, 56, 63, faithful)
        for d in range(4): unpack2(a, 16+4*j+d, 48+2*d, 49+2*d, 63)
        for e in range(8): a(f'v_add_f32 v{40+e}, v{40+e}, v{48+e}')
        for d in range(4): a(f'v_cvt_pk_bf16_f32 v{58+d+4*(j)}, v{40+2*d}, v{41+2*d}')
        so = '0' if j == 0 else 's59'
        a(f'buffer_store_dwordx4 v[{58+4*j}:{61+4*j}], v15, s[12:15], {so} offen')
    if not fused:
        stp()
        if STAMP: a('s_waitcnt vmcnt(0)')
        stp(); stp.flush()
    a.L('K4_END')
    if fused: return
    a('s_endpgm')
    txt, n = a.finalize()
    return txt, 256 if STAMP else 160
```

```python
import sys
sys.path.insert(0, 'gen')
from common import *
from fe import *
from k3 import *
import os
from k4 import *

def build(faithful=True, only=None):
    hdr = open('cdna_kernels/' + NAME + '.s.ref').read().split('; Override launch geometry')[0]
    if os.environ.get('FUSE1', '1') == '1':
        ks = [('front_kernel', lambda n, f: gen_k3(n, f, fused=True), 256, 512, K3_LDS)]
        if not FUSE2: ks.append(('ffn2_kernel', gen_k4, 256, 512, K4_LDS))
    else:
        ks = [('front_kernel', gen_fe, 256, 512, FE_LDS),
              ('ffn1_kernel', gen_k3, 256, 512, K3_LDS),
              ('ffn2_kernel', gen_k4, 256, 512, K4_LDS)]
    out = hdr
    single = len(ks) == 1 and os.environ.get('SINGLE', '1') == '1'
    if single:
        n, g, grid, blk, lds = ks[0]
        ks = [(NAME + '_kernel', g, grid, blk, lds)]
        out += f'; @launch grid=({grid},1,1) block=({blk},1,1) lds={lds}\n'
    else:
      for n, g, grid, blk, lds in ks:
        out += f'; @launch kernel={n} grid=({grid},1,1) block=({blk},1,1) lds={lds}\n'
    out += '.amdgcn_target "amdgcn-amd-amdhsa--gfx950"\n.text\n'
    descs = ''
    for n, g, grid, blk, lds in ks:
        t, v = g(n, faithful)
        out += t
        descs += kernel_desc(n, v)
    out += 'TEXT_END:\n    s_endpgm\n'
    out += '.section .rodata,"a"\n.p2align 6\n' + descs
    return out

if __name__ == '__main__':
    faithful = False
    txt = build(faithful)
    path = 'cdna_kernels/' + NAME + '.s'
    if '-o' in sys.argv: path = sys.argv[sys.argv.index('-o')+1]
    open(path, 'w').write(txt)
    print('wrote', path, len(txt))
```

```python
import sys
sys.path.insert(0, 'gen')
from common import *
from fe import *
from k3 import *
import os
from k4 import *

def build(faithful=True, only=None):
    hdr = open('cdna_kernels/' + NAME + '.s.ref').read().split('; Override launch geometry')[0]
    if os.environ.get('FUSE1', '1') == '1':
        ks = [('front_kernel', lambda n, f: gen_k3(n, f, fused=True), 256, 512, K3_LDS)]
        if not FUSE2: ks.append(('ffn2_kernel', gen_k4, 256, 512, K4_LDS))
    else:
        ks = [('front_kernel', gen_fe, 256, 512, FE_LDS),
              ('ffn1_kernel', gen_k3, 256, 512, K3_LDS),
              ('ffn2_kernel', gen_k4, 256, 512, K4_LDS)]
    out = hdr + '''; Overview (generated by gen/gen.py; all code hand-designed through that generator):
;  front_kernel (256 WGs x 512): persistent pipeline with flag hand-offs (nonce published in d_debug):
;    P0  kv = (4-tap shift conv of k) * v, transposed to per-channel order   -> ws, flag0
;    conv long causal conv as Toeplitz MFMA (16x16x32 bf16), y2 = y + kv*D   -> ws, flag1 ; adaLN GEMV via fp32 atomics
;    P2  LN1 / modulate / residual / LN2 / modulate for 8 rows              -> x1, h2 (MFMA fragment order), flag2
;    GEMM1 h2 @ [w_gate|w_up] with tanh-gelu gate epilogue                  -> H (fragment order) ; w_down re-tiled
;  ffn2_kernel (256 WGs x 512): H @ w_down, out = x1 + gb * (.)
'''
    single = len(ks) == 1 and os.environ.get('SINGLE', '1') == '1'
    if single:
        n, g, grid, blk, lds = ks[0]
        ks = [(NAME + '_kernel', g, grid, blk, lds)]
        out += f'; @launch grid=({grid},1,1) block=({blk},1,1) lds={lds}\n'
    else:
      for n, g, grid, blk, lds in ks:
        out += f'; @launch kernel={n} grid=({grid},1,1) block=({blk},1,1) lds={lds}\n'
    out += '.amdgcn_target "amdgcn-amd-amdhsa--gfx950"\n.text\n'
    descs = ''
    for n, g, grid, blk, lds in ks:
        t, v = g(n, faithful)
        out += t
        descs += kernel_desc(n, v)
    out += 'TEXT_END:\n    s_endpgm\n'
    out += '.section .rodata,"a"\n.p2align 6\n' + descs
    return out

if __name__ == '__main__':
    faithful = False
    txt = build(faithful)
    path = 'cdna_kernels/' + NAME + '.s'
    if '-o' in sys.argv: path = sys.argv[sys.argv.index('-o')+1]
    open(path, 'w').write(txt)
    print('wrote', path, len(txt))
```
